```python
import torch

def _softmax(x, axis=-1):
    return torch.softmax(x, dim=axis)
def _gelu(x):
    return torch.nn.functional.gelu(x, approximate="tanh")
def _silu(x):
    return torch.nn.functional.silu(x)
def _sigmoid(x):
    return torch.sigmoid(x)
def _layernorm(x, axis=-1, eps=1e-5):
    m = x.mean(dim=axis, keepdim=True)
    v = x.var(dim=axis, keepdim=True, unbiased=False)
    return (x - m) / torch.sqrt(v + eps)
def _scatter_add(tgt, idx, src, axis=0):
    return tgt.clone().index_add_(axis, idx, src)
def _segment_sum(src, seg, n):
    out = torch.zeros((n,) + src.shape[1:], dtype=src.dtype)
    return out.index_add_(0, seg, src)
def _pad(x, pw):
    flat = tuple(v for pair in reversed(pw) for v in pair)
    return torch.nn.functional.pad(x, flat)

kernel_name = 'concat_heads__gqa_block_cached__mha_block_cached__near_ridge'

def setup_inputs():

    _w = (lambda a: (lambda t: t.to(torch.bfloat16) if t.is_floating_point() else t)(torch.as_tensor(a)))
    def _A_setup():
        B, Sq, D = 16, 32, 640
        Hq, Hkv, Sk, Dh = 32, 32, 32, 192
        assert Hq % Hkv == 0, (Hq, Hkv)
        return {
            "x": _w((lambda *s: torch.randn(*s, dtype=torch.bfloat16) * 0.8)(B, Sq, D)),
            "k_cache": _w((lambda *s: torch.randn(*s, dtype=torch.bfloat16) * 0.8)(B, Hkv, Sk, Dh)),
            "v_cache": _w((lambda *s: torch.randn(*s, dtype=torch.bfloat16) * 0.05)(B, Hkv, Sk, Dh)),
            "wq": _w((lambda *s: torch.randn(*s, dtype=torch.bfloat16) * 0.8)(D, Hq * Dh) * (D ** -0.5)),
            "wo": _w((lambda *s: torch.randn(*s, dtype=torch.bfloat16) * 0.05)(Hq * Dh, D) * ((Hq * Dh) ** -0.5)),
        }
    _A_in = _A_setup()

    def _B_setup():
        B, Sq, D = 16, 32, 640
        H, Sk, Dh = 32, 32, 192
        return {
            "x": _w((lambda *s: torch.randn(*s, dtype=torch.bfloat16) * 0.8)(B, Sq, D)),
            "k_cache": _w((lambda *s: torch.randn(*s, dtype=torch.bfloat16) * 0.8)(B, H, Sk, Dh)),
            "v_cache": _w((lambda *s: torch.randn(*s, dtype=torch.bfloat16) * 0.05)(B, H, Sk, Dh)),
            "wq": _w((lambda *s: torch.randn(*s, dtype=torch.bfloat16) * 0.8)(D, H * Dh) * (D ** -0.5)),
            "wo": _w((lambda *s: torch.randn(*s, dtype=torch.bfloat16) * 0.05)(H * Dh, D) * ((H * Dh) ** -0.5)),
        }
    _B_in = _B_setup()

    return {
        "A_x": _A_in["x"],
        "A_k_cache": _A_in["k_cache"],
        "A_v_cache": _A_in["v_cache"],
        "A_wq": _A_in["wq"],
        "A_wo": _A_in["wo"],
        "B_x": _B_in["x"],
        "B_k_cache": _B_in["k_cache"],
        "B_v_cache": _B_in["v_cache"],
        "B_wq": _B_in["wq"],
        "B_wo": _B_in["wo"],
    }

def reference(A_x, A_k_cache, A_v_cache, A_wq, A_wo, B_x, B_k_cache, B_v_cache, B_wq, B_wo):
    def _A_ref(x, k_cache, v_cache, wq, wo):
        B, Sq, D = x.shape
        Hq, Dh = 32, 192
        Hkv = k_cache.shape[1]
        rep = Hq // Hkv
        q = (lambda x, *d: x.permute(*d))((x @ wq).reshape(B, Sq, Hq, Dh), 0, 2, 1, 3)
        k = (lambda x, n, axis: torch.repeat_interleave(x, n, dim=axis))(k_cache, rep, axis=1)
        v = (lambda x, n, axis: torch.repeat_interleave(x, n, dim=axis))(v_cache, rep, axis=1)
        scores = torch.einsum("bhqd,bhkd->bhqk", q, k) * (Dh ** -0.5)
        p = _softmax(scores, axis=-1)
        o = torch.einsum("bhqk,bhkd->bhqd", p, v)
        return (lambda x, *d: x.permute(*d))(o, 0, 2, 1, 3).reshape(B, Sq, Hq * Dh) @ wo

    def _B_ref(x, k_cache, v_cache, wq, wo):
        B, Sq, D = x.shape
        H, Dh = 32, 192
        q = (lambda x, *d: x.permute(*d))((x @ wq).reshape(B, Sq, H, Dh), 0, 2, 1, 3)
        scores = torch.einsum("bhqd,bhkd->bhqk", q, k_cache) * (Dh ** -0.5)
        p = _softmax(scores, axis=-1)
        o = torch.einsum("bhqk,bhkd->bhqd", p, v_cache)
        return (lambda x, *d: x.permute(*d))(o, 0, 2, 1, 3).reshape(B, Sq, H * Dh) @ wo

    a = _A_ref(A_x, A_k_cache, A_v_cache, A_wq, A_wo)
    b = _B_ref(B_x, B_k_cache, B_v_cache, B_wq, B_wo)
    return torch.concatenate([a, b], axis=-1)
```

```python
import re

def _regs(tok):
    tok = tok.strip()
    neg = tok.lstrip('-')
    m = re.fullmatch(r'abs\((.*)\)', neg)
    if m: neg = m.group(1)
    m = re.fullmatch(r'([vsa])(\d+)', neg)
    if m: return [(m.group(1), int(m.group(2)))]
    m = re.fullmatch(r'([vsa])\[(\d+):(\d+)\]', neg)
    if m: return [(m.group(1), i) for i in range(int(m.group(2)), int(m.group(3)) + 1)]
    if neg in ('vcc',): return [('x', 'vcc')]
    if neg in ('exec',): return [('x', 'exec')]
    if neg in ('m0',): return [('x', 'm0')]
    if neg in ('scc',): return [('x', 'scc')]
    return []

TRANS = ('v_exp_f32', 'v_log_f32', 'v_rcp_f32', 'v_rsq_f32', 'v_sqrt_f32', 'v_sin_f32', 'v_cos_f32', 'v_rcp_iflag_f32')

class Ins:
    __slots__ = ('op', 'ops', 'mods', 'kind', 'rd', 'wr', 'text', 'passes', 'srcc', 'comment')
    def __init__(self, op, ops, mods='', comment=''):
        self.op = op; self.ops = list(ops); self.mods = mods; self.comment = comment
        self.passes = 0; self.srcc = []
        self.classify()
    def classify(self):
        op = self.op; o = self.ops
        R = lambda i: _regs(o[i]) if i < len(o) else []
        rd = []; wr = []
        if op.startswith('v_mfma'):
            self.kind = 'mfma'
            self.passes = 8 if '32x32x16' in op else (4 if '16x16x32' in op else 16)
            wr = R(0); rd = R(1) + R(2) + R(3); self.srcc = R(3)
        elif op.startswith('v_cmp'):
            self.kind = 'valu'; wr = R(0); rd = R(1) + R(2)
        elif op in ('v_readfirstlane_b32', 'v_readlane_b32'):
            self.kind = 'valu'; wr = R(0); rd = sum((R(i) for i in range(1, len(o))), [])
        elif op.startswith('v_permlane32_swap') or op.startswith('v_permlane16_swap'):
            self.kind = 'valu'; wr = R(0) + R(1); rd = R(0) + R(1)
        elif op in ('v_add_co_u32', 'v_sub_co_u32', 'v_addc_co_u32'):
            self.kind = 'valu'; wr = R(0) + R(1); rd = sum((R(i) for i in range(2, len(o))), [])
        elif op in ('v_fmac_f32', 'v_pk_fmac_f16'):
            self.kind = 'valu'; wr = R(0); rd = R(0) + R(1) + R(2)
        elif op.startswith('v_'):
            self.kind = 'valu'; wr = R(0); rd = sum((R(i) for i in range(1, len(o))), [])
            if op == 'v_cndmask_b32' and len(o) == 3: rd += [('x', 'vcc')]
        elif op.startswith('ds_read') or op.startswith('ds_bpermute') or op.startswith('ds_swizzle') or op.startswith('ds_permute'):
            self.kind = 'ds'; wr = R(0); rd = sum((R(i) for i in range(1, len(o))), [])
        elif op.startswith('ds_'):
            self.kind = 'ds'; rd = sum((R(i) for i in range(len(o))), [])
        elif op.startswith('buffer_load'):
            self.kind = 'vmem'
            if ' lds' in (' ' + self.mods):
                rd = sum((R(i) for i in range(len(o))), []) + [('x', 'm0')]
                self.kind = 'vmem_lds'
            else:
                wr = R(0); rd = sum((R(i) for i in range(1, len(o))), [])
        elif op.startswith('buffer_store'):
            self.kind = 'vmem_st'; rd = sum((R(i) for i in range(len(o))), [])
        elif op.startswith('buffer_atomic'):
            self.kind = 'vmem_st'; rd = sum((R(i) for i in range(len(o))), [])
            if 'sc0' in self.mods: wr = R(0)
        elif op.startswith('global_load'):
            self.kind = 'vmem'; wr = R(0); rd = sum((R(i) for i in range(1, len(o))), [])
        elif op.startswith('global_store'):
            self.kind = 'vmem_st'; rd = sum((R(i) for i in range(len(o))), [])
        elif op.startswith('buffer_inv') or op.startswith('buffer_wbl2'):
            self.kind = 'vmem'
        elif op.startswith('s_'):
            self.kind = 'salu'
            if op.startswith('s_cmp') or op.startswith('s_cbranch') or op in ('s_waitcnt', 's_barrier', 's_nop', 's_branch', 's_endpgm', 's_sleep', 's_setprio', 's_bitcmp1_b32', 's_bitcmp0_b32'):
                rd = sum((R(i) for i in range(len(o))), [])
            elif op.startswith('s_load') or op.startswith('s_buffer_load'):
                wr = R(0); rd = sum((R(i) for i in range(1, len(o))), [])
            elif op.endswith('saveexec_b64'):
                wr = R(0) + [('x', 'exec')]; rd = R(1) + [('x', 'exec')]
            else:
                wr = R(0); rd = sum((R(i) for i in range(1, len(o))), [])
        else:
            raise ValueError('unknown op ' + op)
        self.rd = set(rd); self.wr = set(wr)
        t = op
        if o: t += ' ' + ', '.join(o)
        if self.mods: t += ' ' + self.mods
        self.text = t
    def states(self):
        if self.op == 's_nop': return int(self.ops[0]) + 1
        return 1

def required_gap(p, c):
    need = 0
    pw = p.wr;
    vw = {r for r in pw if r[0] in 'va'}
    if p.kind == 'valu':
        if c.kind == 'mfma' and (vw & c.rd): need = max(need, 2)
        if p.op in TRANS and c.kind == 'valu' and c.op not in TRANS and (vw & (c.rd | c.wr)): need = max(need, 1)
        if p.op in TRANS and c.kind == 'valu' and (vw & c.rd): need = max(need, 1)
        if c.op.startswith('v_permlane') and (vw & c.rd): need = max(need, 2)
        if c.op in ('v_readfirstlane_b32', 'v_readlane_b32') and (vw & c.rd): need = max(need, 1)
        if c.kind == 'valu' and ('dpp' in c.op or 'row_' in c.mods or 'quad_perm' in c.mods) and (vw & c.rd): need = max(need, 2)
        sw = {r for r in pw if r[0] == 's' or r == ('x', 'vcc')}
        if sw:
            if c.kind == 'valu' and (sw & c.rd): need = max(need, 2)
            if c.kind in ('vmem', 'vmem_lds', 'vmem_st') and (sw & c.rd): need = max(need, 5)
            if c.kind == 'salu' and (sw & c.rd): need = max(need, 4)
            if c.op in ('v_readlane_b32', 'v_writelane_b32') and (sw & c.rd): need = max(need, 4)
        if ('x', 'exec') in pw and c.kind in ('valu', 'mfma'): need = max(need, 4)
    if p.kind == 'mfma':
        P = p.passes
        d = p.wr
        full = {4: 8, 8: 12, 16: 20, 2: 5}[P]
        part = {4: 6, 8: 10, 16: 18, 2: 4}[P]
        if c.kind == 'mfma':
            cc = set(c.srcc)
            ab = c.rd - cc
            abregs = set(_regs(c.ops[1]) + _regs(c.ops[2]))
            if d & abregs: need = max(need, full)
            if d & cc:
                if not (cc == d and c.passes == P): need = max(need, part)
            elif d & c.wr:
                need = max(need, part)
        elif c.kind in ('valu',):
            if d & (c.rd | c.wr): need = max(need, full)
            if set(p.srcc) & c.wr: need = max(need, {4: 3, 8: 7, 16: 15, 2: 1}[P])
        elif c.kind in ('ds', 'vmem', 'vmem_lds', 'vmem_st'):
            if d & (c.rd | c.wr): need = max(need, full)
            if set(p.srcc) & c.wr: need = max(need, {4: 3, 8: 7, 16: 15, 2: 1}[P])
    if p.kind == 'salu':
        if ('x', 'm0') in pw and c.kind == 'vmem_lds': need = max(need, 1)
    if p.kind == 'vmem_st' and ('x4' in p.op or 'x3' in p.op):
        data = set(_regs(p.ops[0])) if p.op.startswith('buffer') else set(_regs(p.ops[1]))
        if data & c.wr: need = max(need, 2 if c.kind == 'valu' else 1)
    if p.kind == 'ds' and p.op.startswith('ds_write') and ('b128' in p.op or 'b96' in p.op):
        data = set(_regs(p.ops[1]))
        if data & c.wr and c.kind == 'valu': need = max(need, 2)
    return need

class Asm:
    def __init__(self):
        self.items = []
        self.nlabel = 0
    def i(self, op, *ops, mods='', comment=''):
        ins = Ins(op, [str(x) for x in ops], mods, comment)
        self.items.append(ins); return ins
    def raw(self, s): self.items.append(s)
    def label(self, name): self.items.append(name + ':')
    def newlabel(self, base='L'):
        self.nlabel += 1; return f'{base}_{self.nlabel}'
    def c(self, s): self.items.append('; ' + s)
    def __getattr__(self, name):
        if name.startswith(('v_', 's_', 'ds_', 'buffer_', 'global_')):
            def f(*ops, mods='', comment=''): return self.i(name, *ops, mods=mods, comment=comment)
            return f
        raise AttributeError(name)
    def finalize(self, window=24):
        out = []
        hist = []
        pos = 0
        for it in self.items:
            if isinstance(it, str):
                out.append(it); continue
            need = 0
            for (p, ppos) in hist:
                g = required_gap(p, it)
                if g:
                    have = pos - ppos - p.states() + 0
                    if g - have > need: need = g - have
            while need > 0:
                n = min(need, 16)
                nop = Ins('s_nop', [str(n - 1)])
                out.append(nop); pos += n; need -= n
            out.append(it)
            hist.append((it, pos))
            pos += it.states()
            hist = [(p, pp) for (p, pp) in hist if pos - pp < window + 4]
        lines = []
        for it in out:
            if isinstance(it, str): lines.append(it)
            else:
                lines.append('    ' + it.text + (('    ; ' + it.comment) if it.comment else ''))
        return '\n'.join(lines) + '\n'

def vr(a, n=1):
    return f'v{a}' if n == 1 else f'v[{a}:{a+n-1}]'
def sr(a, n=1):
    return f's{a}' if n == 1 else f's[{a}:{a+n-1}]'
```

```python
import sys, struct
from asmlib import Asm, vr, sr

NAME = "concat_heads__gqa_block_cached__mha_block_cached__near_ridge"
OPT = dict(NT_KV='nt', NT_W='', NT_X='', NT_WO='', NT_O='', INSTR=False, K2_NOMFMA='', K2_NOREAD='', K2_DB='', CLK='')
O_OFF = 0
O_BYTES = 2*16*32*12288
P_OFF = 16 << 20
P_BYTES = 256*40960
SLOT = 40960
T_OFF = 64 << 20

class Q:
    def __init__(self, a, name, mx): self.a = a; self.q = []; self.name = name; self.mx = mx
    def issue(self, tag): self.q.append(tag)
    def wait(self, tags):
        idx = -1
        for i, t in enumerate(self.q):
            if t in tags: idx = i
        if idx < 0: return
        n = min(len(self.q) - 1 - idx, self.mx)
        self.a.s_waitcnt(f'{self.name}({n})')
        self.q = self.q[len(self.q) - n:] if n else []
    def waitall(self):
        self.a.s_waitcnt(f'{self.name}(0)'); self.q = []

class Stamps:
    def __init__(self, a, base_sgpr=50): self.a = a; self.n = 0; self.base = base_sgpr
    def stamp(self):
        if not OPT['INSTR']: return
        (self.a.s_memtime if OPT['CLK'] else self.a.s_memrealtime)(sr(self.base+2*self.n, 2)); self.n += 1
    def flush(self, slot, kidx):
        if not OPT['INSTR']: return
        a = self.a
        a.s_waitcnt('lgkmcnt(0)')
        a.s_mov_b32('s92', 's6'); a.s_and_b32('s93', 's7', '0xffff'); a.s_mov_b32('s94', hex(T_OFF + (4 << 20))); a.s_mov_b32('s95', '0x20000')
        a.s_lshl_b32('s3', 's2', 9); a.s_add_u32('s3', 's3', hex(T_OFF + kidx*(256*512) + slot*128))
        a.v_mov_b32('v30', 0)
        a.s_mov_b64('exec', 1)
        for i in range(self.n):
            a.v_mov_b32('v31', sr(self.base+2*i))
            a.buffer_store_dword('v31', 'v30', 's[92:95]', 's3', mods=f'offen offset:{4*i}')
        a.s_mov_b64('exec', -1)

def preamble(a, kname):
    a.raw('.p2align 8'); a.raw(f'.globl {kname}'); a.raw(f'.type {kname},@function'); a.label(kname)

def decode_ids(a, L_end):
    a.s_cmp_ge_u32('s2', 256); a.s_cbranch_scc1(L_end)
    a.s_and_b32('s3', 's2', 7)
    a.s_lshr_b32('s36', 's3', 2)
    a.s_and_b32('s3', 's3', 3)
    a.s_lshl_b32('s3', 's3', 3)
    a.s_lshr_b32('s4', 's2', 3)
    a.s_and_b32('s5', 's4', 7)
    a.s_or_b32('s37', 's3', 's5')
    a.s_lshr_b32('s38', 's4', 3)
    a.v_lshrrev_b32('v1', 6, 'v0')
    a.v_readfirstlane_b32('s39', 'v1')
    a.v_and_b32('v1', 63, 'v0')

def srd(a, d, lo, hi, size):
    a.s_mov_b32(sr(d), sr(lo)); a.s_and_b32(sr(d+1), sr(hi), '0xffff'); a.s_mov_b32(sr(d+2), hex(size)); a.s_mov_b32(sr(d+3), '0x20000')

def kd(kname, vgpr=256, sgpr=96):
    return f""".p2align 6
.amdhsa_kernel {kname}
  .amdhsa_next_free_vgpr {vgpr}
  .amdhsa_next_free_sgpr {sgpr}
  .amdhsa_accum_offset {vgpr}
  .amdhsa_group_segment_fixed_size 0
  .amdhsa_kernarg_size 104
  .amdhsa_user_sgpr_count 2
  .amdhsa_user_sgpr_kernarg_segment_ptr 1
  .amdhsa_system_sgpr_workgroup_id_x 1
.end_amdhsa_kernel
"""

def M(*parts): return ' '.join(p for p in parts if p)
def offm(off): return f'offset:{off}' if off else ''

def tr_lane_consts(a):
    a.v_lshrrev_b32('v21', 5, 'v1')
    a.v_bfe_u32('v22', 'v1', 4, 1)
    a.v_bfe_u32('v23', 'v1', 2, 2)
    a.v_and_b32('v24', 1, 'v1'); a.v_lshlrev_b32('v24', 1, 'v24'); a.v_bfe_u32('v25', 'v1', 1, 1); a.v_or_b32('v24', 'v24', 'v25')
    a.v_lshl_add_u32('v24', 'v22', 2, 'v24')
    a.v_lshlrev_b32('v24', 3, 'v24')

def gen_k1(a):
    kn = 'k1_kernel'; L_end = 'k1_end'
    preamble(a, kn)
    decode_ids(a, L_end)
    a.s_mul_i32('s3', 's36', 40)
    a.s_load_dwordx8('s[8:15]', 's[0:1]', 's3')
    a.s_load_dwordx2('s[6:7]', 's[0:1]', 96)
    a.s_waitcnt('lgkmcnt(0)')
    srd(a, 16, 8, 9, 512*640*2)
    srd(a, 24, 10, 11, 16*32*12288)
    srd(a, 28, 12, 13, 16*32*12288)
    srd(a, 20, 14, 15, 640*6144*2)
    srd(a, 32, 6, 7, O_OFF + O_BYTES)
    a.s_cmp_lt_u32('s39', 4); a.s_cbranch_scc1('k1_compute')

    a.s_sub_u32('s40', 's39', 4)
    st = Stamps(a); st.stamp()
    a.v_lshrrev_b32('v2', 3, 'v1')
    a.v_and_b32('v3', 7, 'v1')
    a.v_lshrrev_b32('v4', 1, 'v2'); a.v_and_b32('v5', 1, 'v4'); a.v_lshlrev_b32('v5', 2, 'v5'); a.v_xor_b32('v5', 'v3', 'v5')
    a.v_lshlrev_b32('v5', 4, 'v5')
    a.s_mul_i32('s3', 's37', 384)
    a.s_mul_i32('s4', 's40', 16*12288)
    a.s_add_u32('s3', 's3', 's4')
    a.s_mov_b32('s5', 12288)
    a.v_mul_lo_u32('v6', 'v2', 's5')
    a.v_add_u32('v6', 'v6', 'v5')
    a.v_add_u32('v8', 's3', 'v6')
    a.v_add_u32('v9', hex(8*12288), 'v8')
    a.s_lshl_b32('s3', 's38', 7); a.s_lshl_b32('s4', 's40', 5); a.s_add_u32('s3', 's3', 's4'); a.s_mul_i32('s3', 's3', 1280)
    a.s_mov_b32('s5', 1280)
    a.v_mul_lo_u32('v6', 'v2', 's5'); a.v_add_u32('v6', 's3', 'v6')
    a.v_xor_b32('v5', 'v3', 'v4'); a.v_lshlrev_b32('v7', 4, 'v5')
    a.v_xor_b32('v5', 4, 'v5'); a.v_lshlrev_b32('v5', 4, 'v5')
    for i in range(4):
        a.v_add_u32(vr(12+i), 'v6', 'v7' if i % 2 == 0 else 'v5')
        if i: a.v_add_u32(vr(12+i), hex(i*8*1280), vr(12+i))
    a.s_lshl_b32('s41', 's40', 11)
    a.s_lshl_b32('s42', 's40', 12)
    a.s_mul_i32('s43', 's38', 5); a.s_lshr_b32('s43', 's43', 1)
    def issue_stage(s):
        slot = (s % 4) * SLOT
        a.s_mul_i32('s44', 's43', 64*12288)
        a.s_lshl_b32('s45', 's43', 7)
        for rg in range(2):
            for t2 in range(3):
                a.s_add_u32('m0', 's41', hex(slot + t2*8192 + rg*1024 - t2*128))
                a.buffer_load_dwordx4(vr(8+rg), 's[20:23]', 's44', mods=M('offen', offm(t2*128), OPT['NT_W'], 'lds'))
        for i in range(4):
            a.s_add_u32('m0', 's42', hex(slot + 24576 + i*1024))
            a.buffer_load_dwordx4(vr(12+i), 's[16:19]', 's45', mods=M('offen', OPT['NT_X'], 'lds'))
        a.s_add_u32('s43', 's43', 1); a.s_cmp_eq_u32('s43', 10); a.s_cselect_b32('s43', 0, 's43')
    for s in range(4): issue_stage(s)
    st.stamp()
    a.s_waitcnt('vmcnt(30)'); st.stamp(); a.s_barrier()
    for i in range(9):
        st.stamp()
        if i >= 1 and i + 3 <= 9: issue_stage(i+3)
        left = min(9, i+3) - (i+1)
        a.s_waitcnt(f'vmcnt({10*left})')
        a.s_barrier()
    st.stamp()
    if OPT['INSTR']:
        a.s_cmp_eq_u32('s40', 0); a.s_cbranch_scc0('k1_ring_end'); st.flush(0, 0); a.label('k1_ring_end')
    a.s_endpgm()

    a.label('k1_compute')
    AF = 32; XF = 56; ACC = 64; QB = 160; KF = 208; SA = 32; PP = 48
    KS = 160; VS = 208
    a.s_mov_b32('s5', 2731)
    for b3 in range(3):
        a.v_add_u32('v2', 64*b3, 'v1')
        a.v_mul_lo_u32('v3', 'v2', 's5'); a.v_lshrrev_b32('v3', 17, 'v3')
        a.v_xor_b32('v4', 'v2', 'v3'); a.v_lshlrev_b32(vr(32+b3), 4, 'v4')
        a.v_xor_b32('v4', 4, 'v4'); a.v_lshlrev_b32(vr(35+b3), 4, 'v4')
        a.v_and_b32('v3', 1, 'v3'); a.v_lshlrev_b32('v3', 2, 'v3'); a.v_xor_b32('v4', 'v2', 'v3'); a.v_lshlrev_b32(vr(38+b3), 4, 'v4')
    a.s_lshl_b32('s3', 's38', 2); a.s_add_u32('s3', 's3', 's39'); a.s_lshl_b32('s3', 's3', 5); a.s_add_u32('s3', 's3', 's37')
    a.s_mul_i32('s46', 's3', 12288); a.s_add_u32('s47', 's46', 6144)
    for isv in range(2):
        for i in range(12):
            aa, b3 = divmod(i, 3)
            vo = (38+b3) if isv else ((32 if aa % 2 == 0 else 35) + b3)
            a.buffer_load_dwordx4(vr((VS if isv else KS)+4*i, 4), vr(vo), 's[28:31]' if isv else 's[24:27]', sr(46 + (aa >> 1)), mods=M('offen', offm((aa & 1)*3072), OPT['NT_KV']))
    tr_lane_consts(a)
    a.v_lshrrev_b32('v25', 1, 'v23'); a.v_lshlrev_b32('v25', 6, 'v25')
    a.v_add_u32('v24', 'v24', 'v25')
    a.v_lshl_add_u32('v26', 'v21', 3, 'v23'); a.v_lshlrev_b32('v26', 7, 'v26'); a.v_add_u32('v2', 'v26', 'v24')
    a.v_xor_b32('v3', 64, 'v2')
    a.v_add_u32('v4', hex(2*SLOT), 'v2'); a.v_add_u32('v5', hex(2*SLOT), 'v3')
    a.v_and_b32('v26', 31, 'v1'); a.v_bfe_u32('v27', 'v1', 1, 3); a.v_xor_b32('v27', 'v27', 'v21'); a.v_lshlrev_b32('v27', 4, 'v27')
    a.s_lshl_b32('s3', 's39', 12); a.s_add_u32('s3', 's3', 24576)
    a.v_lshl_add_u32('v28', 'v26', 7, 'v27'); a.v_add_u32('v6', 's3', 'v28')
    for s in range(1, 4): a.v_xor_b32(vr(6+s), 32*s, 'v6')
    for s in range(4): a.v_add_u32(vr(10+s), hex(2*SLOT), vr(6+s))
    a.s_mul_i32('s3', 's39', 12288); a.s_add_u32('s4', 's3', 81920)
    a.s_mov_b32('s5', 384)
    a.v_mul_lo_u32('v28', 'v26', 's5'); a.v_add_u32('v28', 'v28', 'v27'); a.v_add_u32('v14', 's4', 'v28')
    for s in range(1, 4): a.v_xor_b32(vr(14+s), 32*s, 'v14')
    a.v_lshlrev_b32('v29', 4, 'v1')
    a.v_add_u32('v30', 's4', 'v29')
    a.s_mov_b32('s47', hex(131072)); a.s_cmp_lt_u32('s39', 2); a.s_cselect_b32('s4', 's47', hex((-24576) & 0xffffffff)); a.s_add_u32('s4', 's4', 's3')
    a.v_lshl_add_u32('v28', 'v21', 2, 'v23'); a.v_mul_lo_u32('v28', 'v28', 's5'); a.v_add_u32('v28', 'v28', 'v24'); a.v_add_u32('v18', 's4', 'v28')
    a.v_xor_b32('v19', 64, 'v18')
    a.v_add_u32('v31', 's4', 'v29')
    a.s_lshl_b32('s3', 's36', 4); a.s_lshl_b32('s4', 's38', 2); a.s_add_u32('s3', 's3', 's4'); a.s_add_u32('s3', 's3', 's39'); a.s_lshl_b32('s3', 's3', 5); a.s_add_u32('s3', 's3', 's37')
    a.s_mul_i32('s44', 's3', 12288)
    a.v_mov_b32('v20', 'v29')

    q = Q(a, 'lgkmcnt', 15)
    def rdA(t, n):
        st_, s = divmod(n, 4); slot = st_ % 4
        base = (2 if slot < 2 else 4) + (t % 2)
        off = (slot % 2) * SLOT + (t//2)*8192 + s*2048
        for e in range(2):
            a.ds_read_b64_tr_b16(vr(AF+4*t+2*e, 2), vr(base), mods=f'offset:{off+e*512}')
            q.issue(('A', t, n))
    def rdX(n):
        st_, s = divmod(n, 4); slot = st_ % 4
        base = (6 if slot < 2 else 10) + s
        a.ds_read_b128(vr(XF+4*(n % 2), 4), vr(base), mods=offm((slot % 2)*SLOT))
        q.issue(('X', n))
    def mf(t, n):
        q.wait([('A', t, n), ('X', n)])
        a.v_mfma_f32_32x32x16_bf16(vr(ACC+16*t, 16), vr(AF+4*t, 4), vr(XF+4*(n % 2), 4), '0' if n == 0 else vr(ACC+16*t, 16))
    def wrKV(isv, i):
        a.ds_write_b128('v31' if isv else 'v30', vr((VS if isv else KS)+4*i, 4), mods=offm(i*1024)); q.issue(('W', isv, i))
    a.s_barrier()
    rdX(0)
    for t in range(6): rdA(t, 0)
    for n in range(40):
        s = n % 4
        if n == 32: a.s_waitcnt('vmcnt(12)')
        if n == 36: a.s_waitcnt('vmcnt(0)')
        wr = None
        if n in (32, 33): wr = (0, (n-32)*6)
        if n in (36, 37): wr = (1, (n-36)*6)
        if s < 3:
            rdX(n+1)
            for t in range(6):
                mf(t, n); rdA(t, n+1)
                if wr: wrKV(wr[0], wr[1]+t)
        else:
            for t in range(3): mf(t, n)
            if n < 39:
                q.waitall(); a.s_barrier()
                rdX(n+1); rdA(0, n+1); rdA(1, n+1)
                mf(3, n); rdA(2, n+1); mf(4, n); rdA(3, n+1); mf(5, n); rdA(4, n+1); rdA(5, n+1)
            else:
                def rdK(s12):
                    aa, sp = divmod(s12, 4)
                    a.ds_read_b128(vr(KF+4*s12, 4), vr(14+sp), mods=offm(aa*128))
                    q.issue(('K', s12))
                for s12 in range(4): rdK(s12)
                mf(3, n)
                for s12 in range(4, 8): rdK(s12)
                mf(4, n)
                for s12 in range(8, 12): rdK(s12)
                mf(5, n)
    for t in range(6):
        for i in range(8):
            a.v_cvt_pk_bf16_f32(vr(QB+8*t+i), vr(ACC+16*t+2*i), vr(ACC+16*t+2*i+1))
    for s12 in range(12):
        q.wait([('K', s12)])
        a.v_mfma_f32_32x32x16_bf16(vr(SA, 16), vr(KF+4*s12, 4), vr(QB+4*s12, 4), '0' if s12 == 0 else vr(SA, 16))
    def rdV(t, u):
        for e in range(2):
            a.ds_read_b64_tr_b16(vr(KF+8*t+4*u+2*e, 2), vr(18+(t % 2)), mods=offm(u*6144+e*3072+(t//2)*128))
            q.issue(('V', t, u))
    order = [(t, u) for t in range(6) for u in range(2)]
    for k in range(7): rdV(*order[k])
    S = lambda j: vr(SA+j)
    a.v_max3_f32('v56', S(0), S(1), S(2))
    for j in range(3, 15, 2): a.v_max3_f32('v56', 'v56', S(j), S(j+1))
    a.v_max_f32('v56', 'v56', S(15))
    a.v_mov_b32('v57', 'v56')
    a.v_permlane32_swap_b32('v56', 'v57')
    a.v_max_f32('v56', 'v56', 'v57')
    c = 192 ** -0.5 * 1.4426950408889634
    cbits = struct.unpack('<I', struct.pack('<f', c))[0]
    a.s_mov_b32('s45', hex(cbits))
    a.v_mul_f32('v56', 's45', 'v56')
    for j in range(16): a.v_fma_f32(S(j), S(j), 's45', '-v56')
    for j in range(16): a.v_exp_f32(S(j), S(j))
    a.v_add_f32('v58', S(0), S(1)); a.v_add_f32('v59', S(2), S(3))
    for j in range(4, 16, 2):
        a.v_add_f32('v58', 'v58', S(j)); a.v_add_f32('v59', 'v59', S(j+1))
    a.v_add_f32('v58', 'v58', 'v59')
    a.v_mov_b32('v59', 'v58')
    a.v_permlane32_swap_b32('v58', 'v59')
    a.v_add_f32('v58', 'v58', 'v59')
    a.v_rcp_f32('v58', 'v58')
    for j in range(16): a.v_mul_f32(S(j), S(j), 'v58')
    for i in range(8): a.v_cvt_pk_bf16_f32(vr(PP+i), S(2*i), S(2*i+1))
    for k, (t, u) in enumerate(order):
        q.wait([('V', t, u)])
        a.v_mfma_f32_32x32x16_bf16(vr(ACC+16*t, 16), vr(KF+8*t+4*u, 4), vr(PP+4*u, 4), '0' if u == 0 else vr(ACC+16*t, 16))
        if k + 7 < 12: rdV(*order[k+7])
    for t in range(6):
        for i in range(8):
            a.v_cvt_pk_bf16_f32(vr(QB+8*t+i), vr(ACC+16*t+2*i), vr(ACC+16*t+2*i+1))
        for u in range(2):
            s12 = 2*t+u
            so = 's44'; off = s12*1024
            if off >= 4096:
                a.s_add_u32('s46', 's44', hex(off & ~4095)); so = 's46'; off &= 4095
            a.buffer_store_dwordx4(vr(QB+4*s12, 4), 'v20', 's[32:35]', so, mods=M('offen', offm(off)))
    if OPT['INSTR']:
        st = Stamps(a); st.stamp(); a.s_waitcnt('vmcnt(0)'); st.stamp()
        a.s_cmp_eq_u32('s39', 0); a.s_cbranch_scc0('k1_c_end'); st.flush(1, 0); a.label('k1_c_end')
    a.s_endpgm()
    a.label(L_end)
    a.s_endpgm()
    return kn

def gen_k2(a):
    kn = 'k2_kernel'; L_end = 'k2_end'
    preamble(a, kn)
    decode_ids(a, L_end)
    a.s_mul_i32('s3', 's36', 40); a.s_add_u32('s3', 's3', 32)
    a.s_load_dwordx2('s[8:9]', 's[0:1]', 's3')
    a.s_load_dwordx2('s[6:7]', 's[0:1]', 96)
    a.s_lshr_b32('s40', 's37', 2)
    a.s_and_b32('s41', 's37', 3)
    a.s_mul_i32('s43', 's38', 6); a.s_lshr_b32('s43', 's43', 2)
    a.s_waitcnt('lgkmcnt(0)')
    srd(a, 20, 8, 9, 6144*640*2)
    srd(a, 32, 6, 7, P_OFF + P_BYTES)
    a.s_cmp_lt_u32('s39', 4); a.s_cbranch_scc1('k2_compute')
    a.s_sub_u32('s42', 's39', 4)
    st = Stamps(a); st.stamp()
    a.s_mov_b32('s5', 3277)
    a.s_mul_i32('s3', 's40', 768*1280); a.s_mul_i32('s4', 's41', 320); a.s_add_u32('s3', 's3', 's4')
    a.s_mul_i32('s4', 's42', 32*1280); a.s_add_u32('s3', 's3', 's4')
    a.s_mov_b32('s4', 1280)
    for b in range(5):
        a.v_add_u32('v2', 64*b, 'v1')
        a.v_mul_lo_u32('v3', 'v2', 's5'); a.v_lshrrev_b32('v3', 16, 'v3')
        a.v_mul_u32_u24('v4', 20, 'v3'); a.v_sub_u32('v4', 'v2', 'v4')
        a.v_mul_lo_u32('v3', 'v3', 's4'); a.v_lshl_add_u32('v3', 'v4', 4, 'v3')
        a.v_add_u32(vr(8+b), 's3', 'v3')
    a.s_mul_i32('s46', 's42', 10240)
    def issue_stage(s):
        slot = (s % 4) * SLOT
        a.s_mul_i32('s44', 's43', 128*1280); a.s_add_u32('s45', 's44', 16*1280)
        for aa in range(2):
            for b in range(5):
                a.s_add_u32('m0', 's46', hex(slot + aa*5120 + b*1024))
                a.buffer_load_dwordx4(vr(8+b), 's[20:23]', sr(44+aa), mods=M('offen', OPT['NT_WO'], 'lds'))
        a.s_add_u32('s43', 's43', 1); a.s_cmp_eq_u32('s43', 6); a.s_cselect_b32('s43', 0, 's43')
    for s in range(4): issue_stage(s)
    st.stamp()
    a.s_waitcnt('vmcnt(30)'); st.stamp(); a.s_barrier()
    for i in range(5):
        st.stamp()
        if i >= 1 and i + 3 <= 5: issue_stage(i+3)
        left = min(5, i+3) - (i+1)
        a.s_waitcnt(f'vmcnt({10*left})')
        a.s_barrier()
    st.stamp()
    if OPT['INSTR']:
        a.s_cmp_eq_u32('s42', 0); a.s_cbranch_scc0('k2_ring_end'); st.flush(0, 1); a.label('k2_ring_end')
    a.s_endpgm()
    a.label('k2_compute')
    AF = 32; ACC = 64; OF = 160
    a.s_lshl_b32('s3', 's36', 4); a.s_lshl_b32('s4', 's38', 2); a.s_add_u32('s3', 's3', 's4'); a.s_add_u32('s3', 's3', 's39'); a.s_lshl_b32('s3', 's3', 5)
    a.s_lshl_b32('s4', 's40', 2); a.s_add_u32('s3', 's3', 's4'); a.s_mul_i32('s44', 's3', 12288)
    a.v_lshlrev_b32('v20', 4, 'v1')
    vq = Q(a, 'vmcnt', 63)
    def ldO(stage):
        a.s_lshl_b32('s45', 's43', 13); a.s_add_u32('s45', 's45', 's44'); a.s_add_u32('s46', 's45', 4096)
        for s in range(8):
            a.buffer_load_dwordx4(vr(OF+32*(stage % 3)+4*s, 4), 'v20', 's[32:35]', 's45' if s < 4 else 's46', mods=M('offen', offm((s % 4)*1024), OPT['NT_O']))
            vq.issue(('O', stage, s))
        a.s_add_u32('s43', 's43', 1); a.s_cmp_eq_u32('s43', 6); a.s_cselect_b32('s43', 0, 's43')
    ldO(0); ldO(1)
    tr_lane_consts(a)
    a.v_lshl_add_u32('v26', 'v21', 3, 'v23'); a.v_mul_u32_u24('v26', 320, 'v26'); a.v_add_u32('v2', 'v26', 'v24')
    for sl in range(1, 4): a.v_add_u32(vr(2+sl), hex(sl*SLOT), 'v2')
    q = Q(a, 'lgkmcnt', 15)
    DB = 1 if OPT['K2_DB'] else 0
    def afr(t, n): return AF + 4*t + (20*(n % 2) if DB else 0)
    def rdA(t, n):
        st_, s = divmod(n, 8); slot = st_ % 4
        off = s*5120 + t*64
        if OPT['K2_NOREAD']: return
        for e in range(2):
            a.ds_read_b64_tr_b16(vr(afr(t, n)+2*e, 2), vr(2+slot), mods=offm(off+e*1280))
            q.issue(('A', t, n))
    def mf(t, n):
        st_, s = divmod(n, 8)
        q.wait([('A', t, n)])
        if t == 0: vq.wait([('O', st_, s)])
        if OPT['K2_NOMFMA'] and n > 0: return
        a.v_mfma_f32_32x32x16_bf16(vr(ACC+16*t, 16), vr(afr(t, n), 4), vr(OF+32*(st_ % 3)+4*s, 4), '0' if n == 0 else vr(ACC+16*t, 16))
    a.s_barrier()
    for t in range(5): rdA(t, 0)
    for n in range(48):
        st_, s = divmod(n, 8)
        if s == 0 and st_ + 2 <= 5: ldO(st_+2)
        if s < 7:
            if DB:
                rdA(0, n+1); rdA(1, n+1)
                mf(0, n); rdA(2, n+1); mf(1, n); rdA(3, n+1); mf(2, n); rdA(4, n+1); mf(3, n); mf(4, n)
            else:
                for t in range(5):
                    mf(t, n); rdA(t, n+1)
        else:
            for t in range(2): mf(t, n)
            if n < 47:
                q.waitall(); a.s_barrier()
                rdA(0, n+1); rdA(1, n+1)
                mf(2, n); rdA(2, n+1); mf(3, n); rdA(3, n+1); mf(4, n); rdA(4, n+1)
            else:
                mf(2, n); mf(3, n); mf(4, n)
    a.s_lshl_b32('s3', 's36', 2); a.s_add_u32('s3', 's3', 's38'); a.s_lshl_b32('s3', 's3', 2); a.s_add_u32('s3', 's3', 's41'); a.s_lshl_b32('s3', 's3', 3); a.s_add_u32('s3', 's3', 's40')
    a.s_mul_i32('s44', 's3', 40960); a.s_mul_i32('s4', 's39', 10240); a.s_add_u32('s44', 's44', 's4'); a.s_add_u32('s44', 's44', hex(P_OFF))
    for t in range(5):
        for i in range(8):
            a.v_cvt_pk_bf16_f32(vr(OF+8*t+i), vr(ACC+16*t+2*i), vr(ACC+16*t+2*i+1))
        for u in range(2):
            f = 2*t+u
            so = 's44'; off = f*1024
            if off >= 4096:
                a.s_add_u32('s46', 's44', hex(off & ~4095)); so = 's46'; off &= 4095
            a.buffer_store_dwordx4(vr(OF+4*f, 4), 'v20', 's[32:35]', so, mods=M('offen', offm(off)))
    if OPT['INSTR']:
        st = Stamps(a); st.stamp(); a.s_waitcnt('vmcnt(0)'); st.stamp()
        a.s_cmp_eq_u32('s39', 0); a.s_cbranch_scc0('k2_c_end'); st.flush(1, 1); a.label('k2_c_end')
    a.s_endpgm()
    a.label(L_end)
    a.s_endpgm()
    return kn

def gen_k3(a):
    kn = 'k3_kernel'; L_end = 'k3_end'
    preamble(a, kn)
    a.s_cmp_ge_u32('s2', 256); a.s_cbranch_scc1(L_end)
    a.s_load_dwordx2('s[6:7]', 's[0:1]', 96)
    a.s_load_dwordx2('s[8:9]', 's[0:1]', 80)
    a.v_lshrrev_b32('v1', 6, 'v0')
    a.v_readfirstlane_b32('s39', 'v1')
    a.v_and_b32('v1', 63, 'v0')
    a.s_lshr_b32('s36', 's2', 3)
    a.s_and_b32('s37', 's2', 7)
    a.s_mul_i32('s38', 's37', 5); a.s_add_u32('s38', 's38', 's39')
    a.s_mul_i32('s3', 's36', 8*40960); a.s_lshl_b32('s4', 's38', 10); a.s_add_u32('s44', 's3', 's4'); a.s_add_u32('s44', 's44', hex(P_OFF))
    a.v_lshlrev_b32('v20', 4, 'v1')
    a.s_waitcnt('lgkmcnt(0)')
    srd(a, 32, 6, 7, P_OFF + P_BYTES)
    srd(a, 28, 8, 9, 16*32*1280*2)
    for kk in range(8):
        a.buffer_load_dwordx4(vr(32+4*kk, 4), 'v20', 's[32:35]', 's44', mods='offen')
        if kk < 7: a.s_add_u32('s44', 's44', 40960)
    a.s_mul_i32('s3', 's38', 6554); a.s_lshr_b32('s3', 's3', 16)
    a.s_mul_i32('s4', 's3', 10); a.s_sub_u32('s4', 's38', 's4')
    a.s_lshr_b32('s5', 's36', 4)
    a.s_bfe_u32('s40', 's36', '0x20002')
    a.s_and_b32('s41', 's36', 3)
    a.s_lshl_b32('s40', 's40', 2); a.s_add_u32('s40', 's40', 's3'); a.s_lshl_b32('s40', 's40', 5)
    a.s_mul_i32('s40', 's40', 2560)
    a.s_mul_i32('s5', 's5', 1280); a.s_add_u32('s40', 's40', 's5')
    a.s_mul_i32('s41', 's41', 320); a.s_add_u32('s40', 's40', 's41')
    a.s_lshl_b32('s4', 's4', 5); a.s_add_u32('s40', 's40', 's4')
    a.v_and_b32('v2', 31, 'v1'); a.v_mul_u32_u24('v2', 2560, 'v2'); a.v_lshrrev_b32('v3', 5, 'v1'); a.v_lshl_add_u32('v2', 'v3', 4, 'v2')
    for kk in range(8):
        a.s_waitcnt(f'vmcnt({7-kk})')
        for i in range(4):
            src = vr(32+4*kk+i)
            if kk == 0:
                a.v_lshlrev_b32(vr(8+2*i), 16, src); a.v_and_b32(vr(9+2*i), '0xffff0000', src)
            else:
                a.v_lshlrev_b32('v16', 16, src); a.v_and_b32('v17', '0xffff0000', src)
                a.v_add_f32(vr(8+2*i), vr(8+2*i), 'v16'); a.v_add_f32(vr(9+2*i), vr(9+2*i), 'v17')
    for i in range(4): a.v_cvt_pk_bf16_f32(vr(24+i), vr(8+2*i), vr(9+2*i))
    a.buffer_store_dwordx4('v[24:27]', 'v2', 's[28:31]', 's40', mods='offen')
    a.label(L_end)
    a.s_endpgm()
    return kn

def build(path, kernels='123'):
    hdr = open('cdna_kernels/%s.s.ref' % NAME).read().split('\n')
    head = [l for l in hdr if l.startswith(';') and '@launch' not in l and 'Override' not in l and 'grid=ceil' not in l]
    out = '\n'.join(head) + '\n'
    if '1' in kernels: out += '; @launch kernel=k1_kernel grid=(256,1,1) block=(512,1,1) lds=163840\n'
    if '2' in kernels: out += '; @launch kernel=k2_kernel grid=(256,1,1) block=(512,1,1) lds=163840\n'
    if '3' in kernels: out += '; @launch kernel=k3_kernel grid=(256,1,1) block=(320,1,1) lds=0\n'
    out += '.amdgcn_target "amdgcn-amd-amdhsa--gfx950"\n.text\n'
    kds = ''
    for gen, vg in ((gen_k1, 256), (gen_k2, 256), (gen_k3, 64)):
        a = Asm(); kn = gen(a); out += a.finalize(); kds += kd(kn, vg)
    out += '.section .rodata,"a"\n' + kds
    open(path, 'w').write(out)

if __name__ == '__main__':
    path = sys.argv[1]
    for arg in sys.argv[2:]:
        k, v = arg.split('=')
        OPT[k] = (v == '1') if k == 'INSTR' else v
    build(path)
```

```python
import sys, struct
from asmlib import Asm, vr, sr

NAME = "concat_heads__gqa_block_cached__mha_block_cached__near_ridge"
KN = NAME + "_kernel"
OPT = dict(NT_KV='', NT_W='', NT_X='', NT_WO='', INSTR=0, ROT=1, SPIN_MAX=200000, FLAG_AT=12, POLL_AT=42,
           BUDGET=14, KVQ=3, KV_IT0=0, PRE=10, WO_PF=0, CSTAGES=2, KV_PRE=0, NOMF=0, NOKV=0, TLBW=0)
O_OFF = 0
O_BYTES = 2*16*32*12288
P_OFF = 16 << 20
P_BYTES = 256*40960
FO_OFF = 28 << 20
FP_OFF = FO_OFF + 256*128
N_OFF = FP_OFF + 128*128
WS_SIZE = N_OFF + 128
SLOT = 40960
T_OFF = 64 << 20
KBASE = 114688
NONCE_C = 0x9E3779B9
WSLOT = [81920, 40960, 61440, 0, 20480, 102400, 122880, 143360, 81920, 40960, 61440, 0]

class Q:
    def __init__(self, a, name, mx): self.a = a; self.q = []; self.name = name; self.mx = mx
    def issue(self, tag): self.q.append(tag)
    def has(self, tag): return tag in self.q
    def wait(self, tags):
        idx = -1
        for i, t in enumerate(self.q):
            if t in tags: idx = i
        if idx < 0: return
        n = min(len(self.q) - 1 - idx, self.mx)
        self.a.s_waitcnt(f'{self.name}({n})')
        self.q = self.q[len(self.q) - n:] if n else []
    def waitall(self):
        self.a.s_waitcnt(f'{self.name}(0)'); self.q = []

class Stamps:
    def __init__(self, a, base_sgpr=64): self.a = a; self.n = 0; self.base = base_sgpr; self.names = []
    def stamp(self, name=''):
        if not OPT['INSTR']: return
        assert self.n < 16, self.names
        self.a.s_memrealtime(sr(self.base+2*self.n, 2)); self.n += 1; self.names.append(name)
    def flush(self, slot):
        if not OPT['INSTR']: return
        a = self.a
        print(f'stamps slot {slot}:', ' '.join(self.names), file=sys.stderr)
        a.s_waitcnt('lgkmcnt(0)')
        a.s_mov_b32('s96', 's6'); a.s_and_b32('s97', 's7', '0xffff'); a.s_mov_b32('s98', hex(T_OFF + (4 << 20))); a.s_mov_b32('s99', '0x20000')
        a.s_lshl_b32('s3', 's2', 9); a.s_add_u32('s3', 's3', hex(T_OFF + slot*128))
        a.v_mov_b32('v30', 0)
        a.s_mov_b64('exec', 1)
        for i in range(self.n):
            a.v_mov_b32('v31', sr(self.base+2*i))
            a.buffer_store_dword('v31', 'v30', 's[96:99]', 's3', mods=f'offen offset:{4*i}')
        a.s_mov_b64('exec', -1)

def srd(a, d, lo, hi, size):
    a.s_mov_b32(sr(d), sr(lo)); a.s_and_b32(sr(d+1), sr(hi), '0xffff'); a.s_mov_b32(sr(d+2), hex(size)); a.s_mov_b32(sr(d+3), '0x20000')
def M(*parts): return ' '.join(p for p in parts if p)
def offm(off): return f'offset:{off}' if off else ''

def get_nonce(a, vtmp, sdst, tag):
    L = f'nonce_{tag}'
    a.s_mov_b32('s51', 0)
    a.label(L)
    a.v_mov_b32(vtmp, 0)
    a.buffer_load_dword(vtmp, vtmp, 's[60:63]', 0, mods='offen sc1')
    a.s_waitcnt('vmcnt(0)')
    a.v_readfirstlane_b32(sdst, vtmp)
    a.s_add_u32('s51', 's51', 1)
    a.s_cmp_gt_u32('s51', OPT['SPIN_MAX']); a.s_cbranch_scc1(L + '_done')
    a.s_cmp_eq_u32(sdst, 0); a.s_cbranch_scc1(L)
    a.label(L + '_done')

def ring_setup(a, lw, vb):
    a.v_lshrrev_b32('v2', 3, 'v1')
    a.v_and_b32('v3', 7, 'v1')
    a.v_lshrrev_b32('v4', 1, 'v2'); a.v_and_b32('v5', 1, 'v4'); a.v_lshlrev_b32('v5', 2, 'v5'); a.v_xor_b32('v5', 'v3', 'v5')
    a.v_lshlrev_b32('v5', 4, 'v5')
    a.s_mul_i32('s3', 's37', 384)
    a.s_mul_i32('s4', lw, 16*12288)
    a.s_add_u32('s3', 's3', 's4')
    a.s_mov_b32('s5', 12288)
    a.v_mul_lo_u32('v6', 'v2', 's5')
    a.v_add_u32('v6', 'v6', 'v5')
    a.v_add_u32(vr(vb), 's3', 'v6')
    a.v_add_u32(vr(vb+1), hex(8*12288), vr(vb))
    a.s_lshl_b32('s3', 's38', 7); a.s_lshl_b32('s4', lw, 5); a.s_add_u32('s3', 's3', 's4'); a.s_mul_i32('s3', 's3', 1280)
    a.s_mov_b32('s5', 1280)
    a.v_mul_lo_u32('v6', 'v2', 's5'); a.v_add_u32('v6', 's3', 'v6')
    a.v_xor_b32('v5', 'v3', 'v4'); a.v_lshlrev_b32('v7', 4, 'v5')
    a.v_xor_b32('v5', 4, 'v5'); a.v_lshlrev_b32('v5', 4, 'v5')
    for i in range(4):
        a.v_add_u32(vr(vb+4+i), 'v6', 'v7' if i % 2 == 0 else 'v5')
        if i: a.v_add_u32(vr(vb+4+i), hex(i*8*1280), vr(vb+4+i))
    a.s_lshl_b32('s44', lw, 11)
    a.s_lshl_b32('s45', lw, 12)
    if OPT['ROT']:
        a.s_mul_i32('s43', 's38', 5); a.s_lshr_b32('s43', 's43', 1)
    else:
        a.s_mov_b32('s43', 0)
    a.s_mul_i32('s46', 's43', 64*12288)
    a.s_lshl_b32('s47', 's43', 7)

def ring_advance(a):
    a.s_add_u32('s43', 's43', 1); a.s_cmp_eq_u32('s43', 10); a.s_cselect_b32('s43', 0, 's43')
    a.s_mul_i32('s46', 's43', 64*12288); a.s_lshl_b32('s47', 's43', 7)

def ring_items(a, vq, vb):
    ring = []
    for s in range(10):
        slot = (s % 4) * SLOT
        items = []
        for rg in range(2):
            for t2 in range(3):
                def f(s=s, slot=slot, rg=rg, t2=t2):
                    a.s_add_u32('m0', 's44', hex(slot + t2*8192 + rg*1024 - t2*128))
                    a.buffer_load_dwordx4(vr(vb+rg), 's[20:23]', 's46', mods=M('offen', offm(t2*128), OPT['NT_W'], 'lds')); vq.issue(('Q', s))
                items.append(f)
        for i in range(4):
            def f(s=s, slot=slot, i=i):
                a.s_add_u32('m0', 's45', hex(slot + 24576 + i*1024))
                a.buffer_load_dwordx4(vr(vb+4+i), 's[16:19]', 's47', mods=M('offen', OPT['NT_X'], 'lds')); vq.issue(('Q', s))
                if i == 3: ring_advance(a)
            items.append(f)
        ring += [(s, f) for f in items]
    return ring

def gen(a):
    a.raw('.p2align 8'); a.raw(f'.globl {KN}'); a.raw(f'.type {KN},@function'); a.label(KN)
    a.s_cmp_ge_u32('s2', 256); a.s_cbranch_scc1('L_end')
    a.s_and_b32('s3', 's2', 7)
    a.s_lshr_b32('s36', 's3', 2)
    a.s_mul_i32('s4', 's36', 40)
    a.s_load_dwordx8('s[8:15]', 's[0:1]', 's4')
    a.s_add_u32('s4', 's4', 32)
    a.s_load_dwordx2('s[48:49]', 's[0:1]', 's4')
    a.s_load_dwordx4('s[56:59]', 's[0:1]', 80)
    a.s_load_dwordx2('s[6:7]', 's[0:1]', 96)
    a.s_and_b32('s3', 's3', 3)
    a.s_lshl_b32('s3', 's3', 3)
    a.s_lshr_b32('s4', 's2', 3)
    a.s_and_b32('s5', 's4', 7)
    a.s_or_b32('s37', 's3', 's5')
    a.s_lshr_b32('s38', 's4', 3)
    a.v_lshrrev_b32('v1', 6, 'v0')
    a.v_readfirstlane_b32('s39', 'v1')
    a.v_and_b32('v1', 63, 'v0')
    a.s_lshr_b32('s40', 's37', 2)
    a.s_and_b32('s41', 's37', 3)
    a.s_cmp_lt_u32('s39', 4); a.s_cbranch_scc1('L_compute')

    a.s_sub_u32('s42', 's39', 4)
    st = Stamps(a); st.stamp('start')
    ring_setup(a, 's42', 8)
    a.s_waitcnt('lgkmcnt(0)')
    srd(a, 20, 14, 15, 640*6144*2)
    srd(a, 16, 8, 9, 512*640*2)
    vq = Q(a, 'vmcnt', 63)
    lq = Q(a, 'lgkmcnt', 15)
    ring = ring_items(a, vq, 8)
    CS = OPT['CSTAGES']
    rpos = [0]
    def issue_ring(n, maxstage):
        k = 0
        while k < n and rpos[0] < len(ring) and ring[rpos[0]][0] <= maxstage:
            ring[rpos[0]][1](); rpos[0] += 1; k += 1
        return k
    issue_ring(10, 0)
    for k in range(CS): ring_advance(a)
    rpos[0] += 10*CS
    srd(a, 24, 10, 11, 16*32*12288)
    srd(a, 28, 12, 13, 16*32*12288)
    srd(a, 52, 48, 49, 6144*640*2)
    issue_ring(OPT['PRE'] - 10, 3)
    srd(a, 32, 6, 7, WS_SIZE)
    srd(a, 60, 58, 59, 256)
    srd(a, 56, 56, 57, 16*32*1280*2)
    if OPT['TLBW']:
        a.v_lshlrev_b32('v2', 20, 'v1')
        a.buffer_load_dword('v200', 'v2', 's[20:23]', 0, mods='offen');
        a.buffer_load_dword('v201', 'v2', 's[52:55]', 0, mods='offen')
        a.buffer_load_dword('v202', 'v2', 's[32:35]', 0, mods='offen')
        a.buffer_load_dword('v203', 'v2', 's[24:27]', 0, mods='offen')
        a.buffer_load_dword('v204', 'v2', 's[28:31]', 0, mods='offen')
        a.buffer_load_dword('v205', 'v2', 's[56:59]', 0, mods='offen')
        for k in range(6): vq.issue(('T',))
    KVO = 21; KS = 64; VS = 112
    a.s_mov_b32('s5', 2731)
    for b3 in range(3):
        a.v_add_u32('v2', 64*b3, 'v1')
        a.v_mul_lo_u32('v3', 'v2', 's5'); a.v_lshrrev_b32('v3', 17, 'v3')
        a.v_xor_b32('v4', 'v2', 'v3'); a.v_lshlrev_b32(vr(KVO+b3), 4, 'v4')
        a.v_xor_b32('v4', 4, 'v4'); a.v_lshlrev_b32(vr(KVO+3+b3), 4, 'v4')
        a.v_and_b32('v3', 1, 'v3'); a.v_lshlrev_b32('v3', 2, 'v3'); a.v_xor_b32('v4', 'v2', 'v3'); a.v_lshlrev_b32(vr(KVO+6+b3), 4, 'v4')
    a.s_lshl_b32('s3', 's38', 2); a.s_add_u32('s3', 's3', 's42'); a.s_lshl_b32('s3', 's3', 5); a.s_add_u32('s3', 's3', 's37')
    a.s_mul_i32('s48', 's3', 12288); a.s_add_u32('s49', 's48', 6144)
    kvn = [0]
    def kvload():
        idx = kvn[0]; kvn[0] += 1
        if OPT['NOKV']: return
        isv, i = divmod(idx, 12)
        aa, b3 = divmod(i, 3)
        vo = (KVO+6+b3) if isv else ((KVO if aa % 2 == 0 else KVO+3) + b3)
        a.buffer_load_dwordx4(vr((VS if isv else KS)+4*i, 4), vr(vo), 's[28:31]' if isv else 's[24:27]', sr(48 + (aa >> 1)), mods=M('offen', offm((aa & 1)*3072), OPT['NT_KV']))
        vq.issue(('KV', isv))
    a.v_lshlrev_b32('v20', 4, 'v1')
    a.s_mul_i32('s3', 's42', 12288); a.s_add_u32('s4', 's3', KBASE); a.v_add_u32('v30', 's4', 'v20')
    a.s_cmp_eq_u32('s42', 3); a.s_cselect_b32('s4', 102400, 's3'); a.v_add_u32('v31', 's4', 'v20')
    WV = 32
    a.s_mov_b32('s5', 3277)
    a.s_mul_i32('s3', 's40', 768*1280); a.s_mul_i32('s4', 's41', 320); a.s_add_u32('s3', 's3', 's4')
    a.s_mul_i32('s4', 's42', 16*1280); a.s_add_u32('s3', 's3', 's4')
    a.s_mov_b32('s4', 1280)
    for b in range(5):
        a.v_add_u32('v2', 64*b, 'v1')
        a.v_mul_lo_u32('v3', 'v2', 's5'); a.v_lshrrev_b32('v3', 16, 'v3')
        a.v_mul_u32_u24('v4', 20, 'v3'); a.v_sub_u32('v4', 'v2', 'v4')
        a.v_mul_lo_u32('v3', 'v3', 's4'); a.v_lshl_add_u32('v3', 'v4', 4, 'v3')
        a.v_add_u32(vr(WV+b), 's3', 'v3')
    a.s_mul_i32('s50', 's42', 5120)
    a.s_mul_i32('s51', 's41', 3)
    def issue_wo(sg):
        a.s_mul_i32('s3', 's51', 64*1280)
        for b in range(5):
            a.s_add_u32('m0', 's50', hex(WSLOT[sg] + b*1024))
            a.buffer_load_dwordx4(vr(WV+b), 's[52:55]', 's3', mods=M('offen', OPT['NT_WO'], 'lds')); vq.issue(('W', sg))
        a.s_add_u32('s51', 's51', 1); a.s_cmp_eq_u32('s51', 12); a.s_cselect_b32('s51', 0, 's51')
    def prefetch_wo(k):
        a.s_add_u32('s3', 's51', k); a.s_cmp_ge_u32('s3', 12); a.s_cselect_b32('s4', 12, 0); a.s_sub_u32('s3', 's3', 's4'); a.s_mul_i32('s3', 's3', 64*1280)
        for b in range(5):
            a.buffer_load_dwordx4(vr(160+4*(5*(k % 4)+b), 4), vr(WV+b), 's[52:55]', 's3', mods=M('offen', OPT['NT_WO'])); vq.issue(('PF',))
    for k in range(OPT['KV_PRE']): kvload()
    st.stamp('pre')
    vq.wait([('Q', 0)]); st.stamp('q0'); a.s_barrier()
    for i in range(0, 9):
        if i in (2, 4, 6, 8): st.stamp(f'B{i}')
        budget = OPT['BUDGET']
        n = issue_ring(budget, min(9, i+2)); budget -= n
        if i >= OPT['KV_IT0']:
            k = 0
            while k < OPT['KVQ'] and kvn[0] < 24 and budget > 0: kvload(); k += 1; budget -= 1
        n = issue_ring(max(budget, 0), min(9, i+3)); budget -= n
        while budget > 0 and kvn[0] < 24 and i >= OPT['KV_IT0'] and rpos[0] == len(ring): kvload(); budget -= 1
        if i == 7:
            while kvn[0] < 24: kvload()
            if OPT['WO_PF']: prefetch_wo(1); prefetch_wo(2)
        if i == 8:
            issue_wo(0)
            vq.wait([('KV', 0)])
            for k in range(12):
                a.ds_write_b128('v30', vr(KS+4*k, 4), mods=offm(k*1024))
            a.s_waitcnt('lgkmcnt(0)')
        vq.wait([('Q', i+1)])
        a.s_barrier()
    assert rpos[0] == len(ring) and kvn[0] == 24
    st.stamp('B9')
    vq.wait([('KV', 1)])
    for k in range(12):
        a.ds_write_b128('v31', vr(VS+4*k, 4), mods=offm(k*1024))
    a.s_waitcnt('lgkmcnt(0)')
    a.s_barrier()
    st.stamp('B10')
    issue_wo(1); issue_wo(2)
    vq.wait([('W', 2)])
    a.s_barrier()
    st.stamp('B11')
    issue_wo(3); issue_wo(4); issue_wo(5); issue_wo(6); issue_wo(7)
    vq.wait([('W', 4)])
    a.s_barrier()
    st.stamp('C1')
    issue_wo(8); issue_wo(9); issue_wo(10)
    vq.wait([('W', 7)])
    a.s_barrier()
    issue_wo(11)
    vq.wait([('W', 8)])
    a.s_barrier()
    vq.waitall()
    a.s_barrier()
    get_nonce(a, 'v2', 's43', 'ld')
    a.s_lshl_b32('s3', 's36', 2); a.s_add_u32('s3', 's3', 's38'); a.s_lshl_b32('s3', 's3', 2); a.s_add_u32('s3', 's3', 's41')
    a.s_lshr_b32('s4', 's40', 1)
    a.s_lshl_b32('s5', 's3', 2); a.s_add_u32('s5', 's5', 's4'); a.s_lshl_b32('s5', 's5', 7); a.s_add_u32('s44', 's5', hex(FP_OFF))
    a.s_and_b32('s5', 's40', 1); a.s_mul_i32('s5', 's5', 5)
    a.s_add_u32('s45', 's5', 's42')
    a.s_mul_i32('s46', 's3', 8*40960); a.s_mul_i32('s47', 's4', 10240); a.s_add_u32('s46', 's46', 's47'); a.s_add_u32('s46', 's46', hex(P_OFF))
    a.s_lshl_b32('s47', 's38', 2); a.s_add_u32('s47', 's47', 's4'); a.s_mul_i32('s47', 's47', 32*2560)
    a.s_mul_i32('s3', 's36', 1280); a.s_add_u32('s47', 's47', 's3'); a.s_mul_i32('s3', 's41', 320); a.s_add_u32('s47', 's47', 's3')
    a.v_and_b32('v2', 31, 'v1'); a.v_mul_u32_u24('v2', 2560, 'v2'); a.v_lshrrev_b32('v3', 5, 'v1'); a.v_lshl_add_u32('v2', 'v3', 4, 'v2')
    a.v_and_b32('v4', 7, 'v1'); a.v_lshlrev_b32('v4', 2, 'v4')
    a.s_barrier()
    st.stamp('D')
    a.s_mov_b32('s50', 0)
    a.label('L_pollP')
    a.buffer_load_dword('v5', 'v4', 's[32:35]', 's44', mods='offen sc1')
    a.s_waitcnt('vmcnt(0)')
    a.v_cmp_ne_u32('vcc', 's43', 'v5')
    a.s_add_u32('s50', 's50', 1)
    a.s_cmp_gt_u32('s50', OPT['SPIN_MAX']); a.s_cbranch_scc1('L_pollP_done')
    a.s_cmp_lg_u64('vcc', 0); a.s_cbranch_scc1('L_pollP')
    a.label('L_pollP_done')
    st.stamp('polled')
    def reduce_load(stu, base):
        a.s_lshl_b32('s3', stu, 10); a.s_add_u32('s3', 's3', 's46')
        for kk in range(8):
            a.buffer_load_dwordx4(vr(base+4*kk, 4), 'v20', 's[32:35]', 's3', mods='offen sc1')
            if kk < 7: a.s_add_u32('s3', 's3', 40960)
    def reduce_sum(stu, base, first_wait, dst):
        for kk in range(8):
            a.s_waitcnt(f'vmcnt({first_wait-kk})')
            for i in range(4):
                src = vr(base+4*kk+i)
                if kk == 0:
                    a.v_lshlrev_b32(vr(8+2*i), 16, src); a.v_and_b32(vr(9+2*i), '0xffff0000', src)
                else:
                    a.v_lshlrev_b32('v16', 16, src); a.v_and_b32('v17', '0xffff0000', src)
                    a.v_add_f32(vr(8+2*i), vr(8+2*i), 'v16'); a.v_add_f32(vr(9+2*i), vr(9+2*i), 'v17')
        for i in range(4): a.v_cvt_pk_bf16_f32(vr(dst+i), vr(8+2*i), vr(9+2*i))
        a.s_lshl_b32('s3', stu, 5); a.s_add_u32('s3', 's3', 's47')
        a.buffer_store_dwordx4(vr(dst, 4), 'v2', 's[56:59]', 's3', mods='offen')
    a.s_cmp_eq_u32('s42', 0); a.s_cbranch_scc1('L_red2')
    reduce_load('s45', 64); reduce_sum('s45', 64, 7, 24)
    a.s_branch('L_red_done')
    a.label('L_red2')
    a.s_add_u32('s50', 's45', 4)
    reduce_load('s45', 64); reduce_load('s50', 96)
    reduce_sum('s45', 64, 15, 24)
    reduce_sum('s50', 96, 8, 28)
    a.label('L_red_done')
    if OPT['INSTR']:
        st.stamp('red'); a.s_waitcnt('vmcnt(0)'); st.stamp('end')
        a.s_cmp_eq_u32('s42', 0); a.s_cbranch_scc0('L_ld_end'); st.flush(0); a.label('L_ld_end')
    a.s_endpgm()

    a.label('L_compute')
    AF = 32; XF = 56; ACC = 64; SA = 32; PP = 56
    QB = 208; KF = 160; VF = 160; OP = 208
    st = Stamps(a)
    vq = Q(a, 'vmcnt', 63)
    a.s_waitcnt('lgkmcnt(0)')
    srd(a, 32, 6, 7, WS_SIZE)
    srd(a, 60, 58, 59, 256)
    a.v_mov_b32('v30', hex(N_OFF))
    a.s_or_b32('s50', 's2', 's39'); a.s_cmp_eq_u32('s50', 0); a.s_cbranch_scc0('L_no_nonce0')
    a.buffer_load_dword('v31', 'v30', 's[32:35]', 0, mods='offen sc1')
    a.label('L_no_nonce0')
    if OPT['CSTAGES']:
        ring_setup(a, 's39', 160)
        srd(a, 20, 14, 15, 640*6144*2)
        srd(a, 16, 8, 9, 512*640*2)
        cring = ring_items(a, vq, 160)
        ring_advance(a)
        for (s_, f_) in cring:
            if 1 <= s_ <= OPT['CSTAGES']: f_()
    a.s_cmp_eq_u32('s50', 0); a.s_cbranch_scc0('L_no_nonce')
    a.s_waitcnt(f"vmcnt({10*OPT['CSTAGES']})")
    a.v_add_u32('v31', hex(NONCE_C), 'v31')
    a.v_cmp_eq_u32('vcc', 0, 'v31')
    a.v_mov_b32('v4', hex(NONCE_C))
    a.v_cndmask_b32('v31', 'v31', 'v4', 'vcc')
    a.s_mov_b64('exec', 1)
    a.buffer_store_dword('v31', 'v30', 's[32:35]', 0, mods='offen sc1')
    a.v_mov_b32('v4', 0)
    a.buffer_store_dword('v31', 'v4', 's[60:63]', 0, mods='offen sc1')
    a.s_mov_b64('exec', -1)
    a.label('L_no_nonce')
    T = 32
    hf, G2, r_, d48, t1, t2_, t3, t4 = [vr(T+i) for i in range(8)]
    a.v_lshrrev_b32(hf, 5, 'v1'); a.v_bfe_u32(G2, 'v1', 4, 1); a.v_bfe_u32(r_, 'v1', 2, 2)
    a.v_and_b32(d48, 1, 'v1'); a.v_lshlrev_b32(d48, 1, d48); a.v_bfe_u32(t1, 'v1', 1, 1); a.v_or_b32(d48, d48, t1)
    a.v_lshl_add_u32(d48, G2, 2, d48); a.v_lshlrev_b32(d48, 3, d48)
    a.v_lshrrev_b32(t1, 1, r_); a.v_lshlrev_b32(t1, 6, t1); a.v_add_u32(t1, d48, t1)
    a.v_lshl_add_u32(t2_, hf, 3, r_)
    a.v_lshlrev_b32(t3, 7, t2_); a.v_add_u32('v2', t3, t1)
    a.v_xor_b32('v3', 64, 'v2')
    a.v_add_u32('v4', hex(2*SLOT), 'v2'); a.v_add_u32('v5', hex(2*SLOT), 'v3')
    a.v_mul_u32_u24('v30', 320, t2_); a.v_add_u32('v30', 'v30', d48)
    a.v_and_b32(t3, 31, 'v1'); a.v_bfe_u32(t4, 'v1', 1, 3); a.v_xor_b32(t4, t4, hf); a.v_lshlrev_b32(t4, 4, t4)
    a.s_lshl_b32('s3', 's39', 12); a.s_add_u32('s3', 's3', 24576)
    a.v_lshl_add_u32(G2, t3, 7, t4); a.v_add_u32('v6', 's3', G2)
    for s in range(1, 4): a.v_xor_b32(vr(6+s), 32*s, 'v6')
    for s in range(4): a.v_add_u32(vr(10+s), hex(2*SLOT), vr(6+s))
    a.s_mul_i32('s3', 's39', 12288); a.s_add_u32('s4', 's3', KBASE)
    a.s_mov_b32('s5', 384)
    a.v_mul_lo_u32(G2, t3, 's5'); a.v_add_u32(G2, G2, t4); a.v_add_u32('v14', 's4', G2)
    for s in range(1, 4): a.v_xor_b32(vr(14+s), 32*s, 'v14')
    a.s_cmp_eq_u32('s39', 3); a.s_cselect_b32('s4', 102400, 's3')
    a.v_lshl_add_u32(G2, hf, 2, r_); a.v_mul_lo_u32(G2, G2, 's5'); a.v_add_u32(G2, G2, t1); a.v_add_u32('v18', 's4', G2)
    a.v_xor_b32('v19', 64, 'v18')
    a.v_lshlrev_b32('v20', 4, 'v1')
    a.s_lshl_b32('s3', 's36', 4); a.s_lshl_b32('s4', 's38', 2); a.s_add_u32('s3', 's3', 's4'); a.s_add_u32('s3', 's3', 's39'); a.s_lshl_b32('s3', 's3', 5)
    a.s_add_u32('s4', 's3', 's37'); a.s_mul_i32('s44', 's4', 12288)
    a.s_lshl_b32('s4', 's40', 2); a.s_add_u32('s3', 's3', 's4'); a.s_mul_i32('s45', 's3', 12288)
    a.s_lshl_b32('s3', 's36', 2); a.s_add_u32('s3', 's3', 's38'); a.s_lshl_b32('s4', 's3', 3); a.s_add_u32('s4', 's4', 's40'); a.s_lshl_b32('s4', 's4', 2); a.s_add_u32('s4', 's4', 's39')
    a.s_lshl_b32('s4', 's4', 7); a.s_add_u32('s48', 's4', hex(FO_OFF))
    a.s_lshl_b32('s4', 's41', 2); a.s_add_u32('s49', 's48', 's4')
    a.s_lshl_b32('s3', 's3', 2); a.s_add_u32('s3', 's3', 's41')
    a.s_lshl_b32('s4', 's3', 3); a.s_add_u32('s4', 's4', 's40'); a.s_mul_i32('s4', 's4', 40960); a.s_mul_i32('s5', 's39', 10240); a.s_add_u32('s4', 's4', 's5'); a.s_add_u32('s52', 's4', hex(P_OFF))
    a.s_lshl_b32('s4', 's3', 2); a.s_add_u32('s4', 's4', 's39'); a.s_lshl_b32('s4', 's4', 7); a.s_lshl_b32('s5', 's40', 2); a.s_add_u32('s4', 's4', 's5'); a.s_add_u32('s43', 's4', hex(FP_OFF))

    q = Q(a, 'lgkmcnt', 15)
    def rdA(t, n):
        if OPT['NOMF'] > 1 and n > 0: return
        st_, s = divmod(n, 4); slot = st_ % 4
        base = (2 if slot < 2 else 4) + (t % 2)
        off = (slot % 2) * SLOT + (t//2)*8192 + s*2048
        for e in range(2):
            a.ds_read_b64_tr_b16(vr(AF+4*t+2*e, 2), vr(base), mods=offm(off+e*512))
            q.issue(('A', t, n))
    def rdX(n):
        st_, s = divmod(n, 4); slot = st_ % 4
        base = (6 if slot < 2 else 10) + s
        a.ds_read_b128(vr(XF+4*(n % 2), 4), vr(base), mods=offm((slot % 2)*SLOT))
        q.issue(('X', n))
    def mf(t, n):
        if OPT['NOMF'] and n > 0: return
        q.wait([('A', t, n), ('X', n)])
        a.v_mfma_f32_32x32x16_bf16(vr(ACC+16*t, 16), vr(AF+4*t, 4), vr(XF+4*(n % 2), 4), '0' if n == 0 else vr(ACC+16*t, 16))
    def rdK(s12):
        aa, sp = divmod(s12, 4)
        a.ds_read_b128(vr(KF+4*s12, 4), vr(14+sp), mods=offm(aa*128)); q.issue(('K', s12))
    def cvtQ(t):
        for i in range(8): a.v_cvt_pk_bf16_f32(vr(QB+8*t+i), vr(ACC+16*t+2*i), vr(ACC+16*t+2*i+1))
    def rdV(t, u):
        for e in range(2):
            a.ds_read_b64_tr_b16(vr(VF+8*t+4*u+2*e, 2), vr(18+(t % 2)), mods=offm(u*6144+e*3072+(t//2)*128))
            q.issue(('V', t, u))
    st.stamp('pre')
    a.s_barrier()
    st.stamp('B0')
    rdX(0)
    for t in range(6): rdA(t, 0)
    for n in range(40):
        s = n % 4
        extra = []
        if n in (36, 37, 38): extra = [(lambda i=i: rdK(i)) for i in range((n-36)*4, (n-36)*4+4)]
        if s < 3:
            rdX(n+1)
            for t in range(6):
                mf(t, n); rdA(t, n+1)
                if t < len(extra): extra[t]()
        else:
            for t in range(3): mf(t, n)
            q.waitall()
            vq.wait([('Q', n//4 + 1)])
            a.s_barrier()
            if n < 39:
                rdX(n+1); rdA(0, n+1); rdA(1, n+1)
                mf(3, n); rdA(2, n+1); mf(4, n); rdA(3, n+1); mf(5, n); rdA(4, n+1); rdA(5, n+1)
            else:
                a.v_mov_b32('v2', 0)
                a.buffer_load_dword('v5', 'v2', 's[60:63]', 0, mods='offen sc1')
                mf(3, n); cvtQ(0); mf(4, n); cvtQ(1); mf(5, n); cvtQ(2)
    st.stamp('qdone')
    def mS(s12):
        a.v_mfma_f32_32x32x16_bf16(vr(SA, 16), vr(KF+4*s12, 4), vr(QB+4*s12, 4), '0' if s12 == 0 else vr(SA, 16))
    order = [(t, u) for t in range(6) for u in range(2)]
    mS(0); mS(1); cvtQ(3); mS(2); mS(3); cvtQ(4); mS(4); mS(5); cvtQ(5)
    for s12 in range(6, 12): mS(s12)
    for k in range(7): rdV(*order[k])
    S = lambda j: vr(SA+j)
    m0_, m1_ = 'v48', 'v49'
    a.v_max3_f32(m0_, S(0), S(1), S(2))
    for j in range(3, 15, 2): a.v_max3_f32(m0_, m0_, S(j), S(j+1))
    a.v_max_f32(m0_, m0_, S(15))
    a.v_mov_b32(m1_, m0_)
    a.v_permlane32_swap_b32(m0_, m1_)
    a.v_max_f32(m0_, m0_, m1_)
    c = 192 ** -0.5 * 1.4426950408889634
    cbits = struct.unpack('<I', struct.pack('<f', c))[0]
    a.s_mov_b32('s46', hex(cbits))
    a.v_mul_f32(m0_, 's46', m0_)
    for j in range(16): a.v_fma_f32(S(j), S(j), 's46', '-' + m0_)
    for j in range(16): a.v_exp_f32(S(j), S(j))
    for k in range(7, 12): rdV(*order[k])
    a.v_add_f32('v50', S(0), S(1)); a.v_add_f32('v51', S(2), S(3))
    for j in range(4, 16, 2):
        a.v_add_f32('v50', 'v50', S(j)); a.v_add_f32('v51', 'v51', S(j+1))
    a.v_add_f32('v50', 'v50', 'v51')
    a.v_mov_b32('v51', 'v50')
    a.v_permlane32_swap_b32('v50', 'v51')
    a.v_add_f32('v50', 'v50', 'v51')
    a.v_rcp_f32('v50', 'v50')
    for j in range(16): a.v_mul_f32(S(j), S(j), 'v50')
    for i in range(8): a.v_cvt_pk_bf16_f32(vr(PP+i), S(2*i), S(2*i+1))
    st.stamp('smax')
    a.s_waitcnt('vmcnt(0)'); vq.q = []
    a.v_readfirstlane_b32('s47', 'v5')
    a.s_cmp_lg_u32('s47', 0); a.s_cbranch_scc1('L_have_nonce')
    get_nonce(a, 'v5', 's47', 'cp')
    a.label('L_have_nonce')
    a.v_mov_b32('v2', 'v30'); a.v_add_u32('v3', hex(61440), 'v30'); a.v_add_u32('v4', hex(122880), 'v30')
    ACC2 = 64
    seq = [(t, n2) for n2 in range(36) for t in range(5)] + [(t, n2) for t in range(5) for n2 in range(36, 48)]
    pos = {p: i for i, p in enumerate(seq)}
    def afbuf(t, n2): return pos[(t, n2)] % 5
    def rdW(t, n2):
        sg, s = divmod(n2, 4)
        ad = WSLOT[sg]; b = ad // 61440; o = ad - b*61440
        off = o + s*5120 + t*64
        for e in range(2):
            a.ds_read_b64_tr_b16(vr(AF+4*afbuf(t, n2)+2*e, 2), vr(2+b), mods=offm(off+e*1280))
            q.issue(('W', t, n2))
    R2 = [144, 148, 152, 156, 52, 8, 12, 16, 24, 28, 56, 60]
    def bfrag(n2):
        hr, s12 = divmod(n2, 12)
        if hr == 0 or hr == 3: return OP + 4*s12
        if hr == 1: return 160 + 4*s12
        return R2[s12]
    def pv(t, u):
        q.wait([('V', t, u)])
        a.v_mfma_f32_32x32x16_bf16(vr(ACC+16*t, 16), vr(VF+8*t+4*u, 4), vr(PP+4*u, 4), '0' if u == 0 else vr(ACC+16*t, 16))
    def cvt_store(dst, acc, sbase, f0):
        for i in range(8): a.v_cvt_pk_bf16_f32(vr(dst+i), vr(acc+2*i), vr(acc+2*i+1))
        for u in range(2):
            f = f0+u
            so = sbase; off = f*1024
            if off >= 4096:
                a.s_add_u32('s46', sbase, hex(off & ~4095)); so = 's46'; off &= 4095
            a.buffer_store_dwordx4(vr(dst+4*u, 4), 'v20', 's[32:35]', so, mods=M('offen', offm(off), 'sc1'))
            vq.issue(('ST',))
    def cso(t): cvt_store(OP+8*t, ACC+16*t, 's44', 2*t)
    pv(0, 0); pv(0, 1); pv(1, 0); pv(1, 1)
    cso(0)
    pv(2, 0); pv(2, 1); cso(1)
    pv(3, 0); pv(3, 1); cso(2)
    pv(4, 0); pv(4, 1); cso(3)
    pv(5, 0); pv(5, 1); cso(4)
    cso(5)
    st.stamp('ostored')
    q.waitall(); a.s_barrier()
    for i in range(5): rdW(*seq[i])
    def set_flag(saddr):
        a.s_waitcnt('vmcnt(0)'); vq.q = []
        a.s_mov_b64('exec', 1)
        a.v_mov_b32('v5', 's47'); a.v_mov_b32('v6', 0)
        a.buffer_store_dword('v5', 'v6', 's[32:35]', saddr, mods='offen sc1')
        a.s_mov_b64('exec', -1)
        vq.issue(('F',))
    BAR = {pos[(0, 12)]: 'C1', pos[(0, 20)]: 'C2', pos[(0, 32)]: 'C3a', pos[(0, 36)]: 'C3b'}
    nxt = 5
    done_bar = set()
    pend = {}
    def ldR(hr, s12):
        if s12 % 4 == 0:
            a.s_add_u32('s3', 's41', hr); a.s_and_b32('s3', 's3', 3); a.s_mul_i32('s3', 's3', 12288); a.s_add_u32('s3', 's3', 's45')
            if s12: a.s_add_u32('s3', 's3', s12*1024)
            a.s_mov_b32(f's{53+hr}', 's3')
        a.buffer_load_dwordx4(vr(bfrag(12*hr+s12), 4), 'v20', 's[32:35]', f's{53+hr}', mods=M('offen', offm((s12 % 4)*1024), 'sc1'))
        vq.issue(('R', 12*hr+s12))
    rl = [(hr, s12) for hr in range(1, 4) for s12 in range(12)]
    rli = 0
    for i, (t, n2) in enumerate(seq):
        if i == pos[(0, 12)]:
            a.s_mov_b32('s50', 0)
            a.s_waitcnt('vmcnt(0)'); vq.q = []
            a.v_cmp_ne_u32('vcc', 's47', 'v6')
            a.s_cmp_lg_u64('vcc', 0); a.s_cbranch_scc0('L_pollO_done')
            a.label('L_pollO')
            a.buffer_load_dword('v6', 'v5', 's[32:35]', 's48', mods='offen sc1')
            a.s_waitcnt('vmcnt(0)')
            a.v_cmp_ne_u32('vcc', 's47', 'v6')
            a.s_add_u32('s50', 's50', 1)
            a.s_cmp_gt_u32('s50', OPT['SPIN_MAX']); a.s_cbranch_scc1('L_pollO_done')
            a.s_cmp_lg_u64('vcc', 0); a.s_cbranch_scc1('L_pollO')
            a.label('L_pollO_done')
            st.stamp('polled')
            for k in range(12): ldR(*rl[rli]); rli += 1
        q.wait([('W', t, n2)])
        if vq.has(('R', n2)): vq.wait([('R', n2)])
        a.v_mfma_f32_32x32x16_bf16(vr(ACC2+16*t, 16), vr(AF+4*afbuf(t, n2), 4), vr(bfrag(n2), 4), '0' if n2 == 0 else vr(ACC2+16*t, 16))
        if i == pos[(0, 12)]: st.stamp('r1first')
        if n2 == 47 and t < 4: pend[i+3] = t
        while nxt < len(seq) and nxt - 5 <= i:
            if nxt in BAR and BAR[nxt] not in done_bar:
                if i < nxt - 3: break
                q.waitall(); a.s_barrier(); done_bar.add(BAR[nxt])
                if BAR[nxt] in ('C1', 'C2', 'C3b'): st.stamp(BAR[nxt])
            rdW(*seq[nxt]); nxt += 1
        if i >= pos[(0, 12)] and rli < len(rl) and (i % 2 == 0):
            hr, s12 = rl[rli]
            ldR(hr, s12); rli += 1
        if i == OPT['FLAG_AT']: set_flag('s49')
        if i == OPT['POLL_AT']:
            a.v_and_b32('v5', 3, 'v1'); a.v_lshlrev_b32('v5', 2, 'v5')
            a.buffer_load_dword('v6', 'v5', 's[32:35]', 's48', mods='offen sc1'); vq.issue(('P',))
        if i in pend: cvt_store(160+8*pend[i], ACC2+16*pend[i], 's52', 2*pend[i])
    assert len(done_bar) == 4 and rli == len(rl)
    cvt_store(160+32, ACC2+64, 's52', 8)
    st.stamp('mdone')
    a.s_barrier()
    set_flag('s43')
    if OPT['INSTR']:
        st.stamp('flag')
        a.s_cmp_eq_u32('s39', 0); a.s_cbranch_scc0('L_c_end'); st.flush(1); a.label('L_c_end')
    a.s_endpgm()
    a.label('L_end')
    a.s_endpgm()

def build(path):
    hdr = open('cdna_kernels/%s.s.ref' % NAME).read().split('\n')
    head = [l for l in hdr if l.startswith(';') and '@launch' not in l and 'Override' not in l and 'grid=ceil' not in l]
    out = '\n'.join(head) + '\n'
    out += '; @launch grid=(256,1,1) block=(512,1,1) lds=163840\n'
    out += '.amdgcn_target "amdgcn-amd-amdhsa--gfx950"\n.text\n'
    a = Asm(); gen(a); out += a.finalize()
    out += f""".section .rodata,"a"
.p2align 6
.amdhsa_kernel {KN}
  .amdhsa_next_free_vgpr 256
  .amdhsa_next_free_sgpr 102
  .amdhsa_accum_offset 256
  .amdhsa_group_segment_fixed_size 0
  .amdhsa_kernarg_size 104
  .amdhsa_user_sgpr_count 2
  .amdhsa_user_sgpr_kernarg_segment_ptr 1
  .amdhsa_system_sgpr_workgroup_id_x 1
.end_amdhsa_kernel
"""
    open(path, 'w').write(out)

if __name__ == '__main__':
    path = sys.argv[1]
    for arg in sys.argv[2:]:
        k, v = arg.split('=')
        OPT[k] = int(v) if isinstance(OPT[k], int) else v
    build(path)
```

```python
import sys, struct
from asmlib import Asm, vr, sr

NAME = "concat_heads__gqa_block_cached__mha_block_cached__near_ridge"
KN = NAME + "_kernel"
OPT = dict(NT_KV='', NT_W='', NT_X='', NT_WO='', INSTR=0, ROT=1, SPIN_MAX=200000, FLAG_AT=12, POLL_AT=42,
           BUDGET=14, KVQ=3, KV_IT0=0, PRE=10, WO_PF=0, CSTAGES=2, KV_PRE=0, NOMF=0, NOKV=0, TLBW=0, WO_PF_IT=7)
O_OFF = 0
O_BYTES = 2*16*32*12288
P_OFF = 16 << 20
P_BYTES = 256*40960
FO_OFF = 28 << 20
FP_OFF = FO_OFF + 256*128
N_OFF = FP_OFF + 128*128
WS_SIZE = N_OFF + 128
SLOT = 40960
T_OFF = 64 << 20
KBASE = 114688
NONCE_C = 0x9E3779B9
WSLOT = [81920, 40960, 61440, 0, 20480, 102400, 122880, 143360, 81920, 40960, 61440, 0]

class Q:
    def __init__(self, a, name, mx): self.a = a; self.q = []; self.name = name; self.mx = mx
    def issue(self, tag): self.q.append(tag)
    def has(self, tag): return tag in self.q
    def wait(self, tags):
        idx = -1
        for i, t in enumerate(self.q):
            if t in tags: idx = i
        if idx < 0: return
        n = min(len(self.q) - 1 - idx, self.mx)
        self.a.s_waitcnt(f'{self.name}({n})')
        self.q = self.q[len(self.q) - n:] if n else []
    def waitall(self):
        self.a.s_waitcnt(f'{self.name}(0)'); self.q = []

class Stamps:
    def __init__(self, a, base_sgpr=64): self.a = a; self.n = 0; self.base = base_sgpr; self.names = []
    def stamp(self, name=''):
        if not OPT['INSTR']: return
        assert self.n < 16, self.names
        self.a.s_memrealtime(sr(self.base+2*self.n, 2)); self.n += 1; self.names.append(name)
    def flush(self, slot):
        if not OPT['INSTR']: return
        a = self.a
        print(f'stamps slot {slot}:', ' '.join(self.names), file=sys.stderr)
        a.s_waitcnt('lgkmcnt(0)')
        a.s_mov_b32('s96', 's6'); a.s_and_b32('s97', 's7', '0xffff'); a.s_mov_b32('s98', hex(T_OFF + (4 << 20))); a.s_mov_b32('s99', '0x20000')
        a.s_lshl_b32('s3', 's2', 9); a.s_add_u32('s3', 's3', hex(T_OFF + slot*128))
        a.v_mov_b32('v30', 0)
        a.s_mov_b64('exec', 1)
        for i in range(self.n):
            a.v_mov_b32('v31', sr(self.base+2*i))
            a.buffer_store_dword('v31', 'v30', 's[96:99]', 's3', mods=f'offen offset:{4*i}')
        a.s_mov_b64('exec', -1)

def srd(a, d, lo, hi, size):
    a.s_mov_b32(sr(d), sr(lo)); a.s_and_b32(sr(d+1), sr(hi), '0xffff'); a.s_mov_b32(sr(d+2), hex(size)); a.s_mov_b32(sr(d+3), '0x20000')
def M(*parts): return ' '.join(p for p in parts if p)
def offm(off): return f'offset:{off}' if off else ''

def get_nonce(a, vtmp, sdst, tag):
    L = f'nonce_{tag}'
    a.s_mov_b32('s51', 0)
    a.label(L)
    a.v_mov_b32(vtmp, 0)
    a.buffer_load_dword(vtmp, vtmp, 's[60:63]', 0, mods='offen sc1')
    a.s_waitcnt('vmcnt(0)')
    a.v_readfirstlane_b32(sdst, vtmp)
    a.s_add_u32('s51', 's51', 1)
    a.s_cmp_gt_u32('s51', OPT['SPIN_MAX']); a.s_cbranch_scc1(L + '_done')
    a.s_cmp_eq_u32(sdst, 0); a.s_cbranch_scc1(L)
    a.label(L + '_done')

def ring_setup(a, lw, vb):
    a.v_lshrrev_b32('v2', 3, 'v1')
    a.v_and_b32('v3', 7, 'v1')
    a.v_lshrrev_b32('v4', 1, 'v2'); a.v_and_b32('v5', 1, 'v4'); a.v_lshlrev_b32('v5', 2, 'v5'); a.v_xor_b32('v5', 'v3', 'v5')
    a.v_lshlrev_b32('v5', 4, 'v5')
    a.s_mul_i32('s3', 's37', 384)
    a.s_mul_i32('s4', lw, 16*12288)
    a.s_add_u32('s3', 's3', 's4')
    a.s_mov_b32('s5', 12288)
    a.v_mul_lo_u32('v6', 'v2', 's5')
    a.v_add_u32('v6', 'v6', 'v5')
    a.v_add_u32(vr(vb), 's3', 'v6')
    a.v_add_u32(vr(vb+1), hex(8*12288), vr(vb))
    a.s_lshl_b32('s3', 's38', 7); a.s_lshl_b32('s4', lw, 5); a.s_add_u32('s3', 's3', 's4'); a.s_mul_i32('s3', 's3', 1280)
    a.s_mov_b32('s5', 1280)
    a.v_mul_lo_u32('v6', 'v2', 's5'); a.v_add_u32('v6', 's3', 'v6')
    a.v_xor_b32('v5', 'v3', 'v4'); a.v_lshlrev_b32('v7', 4, 'v5')
    a.v_xor_b32('v5', 4, 'v5'); a.v_lshlrev_b32('v5', 4, 'v5')
    for i in range(4):
        a.v_add_u32(vr(vb+4+i), 'v6', 'v7' if i % 2 == 0 else 'v5')
        if i: a.v_add_u32(vr(vb+4+i), hex(i*8*1280), vr(vb+4+i))
    a.s_lshl_b32('s44', lw, 11)
    a.s_lshl_b32('s45', lw, 12)
    if OPT['ROT']:
        a.s_mul_i32('s43', 's38', 5); a.s_lshr_b32('s43', 's43', 1)
    else:
        a.s_mov_b32('s43', 0)
    a.s_mul_i32('s46', 's43', 64*12288)
    a.s_lshl_b32('s47', 's43', 7)

def ring_advance(a):
    a.s_add_u32('s43', 's43', 1); a.s_cmp_eq_u32('s43', 10); a.s_cselect_b32('s43', 0, 's43')
    a.s_mul_i32('s46', 's43', 64*12288); a.s_lshl_b32('s47', 's43', 7)

def ring_items(a, vq, vb):
    ring = []
    for s in range(10):
        slot = (s % 4) * SLOT
        items = []
        for rg in range(2):
            for t2 in range(3):
                def f(s=s, slot=slot, rg=rg, t2=t2):
                    a.s_add_u32('m0', 's44', hex(slot + t2*8192 + rg*1024 - t2*128))
                    a.buffer_load_dwordx4(vr(vb+rg), 's[20:23]', 's46', mods=M('offen', offm(t2*128), OPT['NT_W'], 'lds')); vq.issue(('Q', s))
                items.append(f)
        for i in range(4):
            def f(s=s, slot=slot, i=i):
                a.s_add_u32('m0', 's45', hex(slot + 24576 + i*1024))
                a.buffer_load_dwordx4(vr(vb+4+i), 's[16:19]', 's47', mods=M('offen', OPT['NT_X'], 'lds')); vq.issue(('Q', s))
                if i == 3: ring_advance(a)
            items.append(f)
        ring += [(s, f) for f in items]
    return ring

def gen(a):
    a.raw('.p2align 8'); a.raw(f'.globl {KN}'); a.raw(f'.type {KN},@function'); a.label(KN)
    a.s_cmp_ge_u32('s2', 256); a.s_cbranch_scc1('L_end')
    a.s_and_b32('s3', 's2', 7)
    a.s_lshr_b32('s36', 's3', 2)
    a.s_mul_i32('s4', 's36', 40)
    a.s_load_dwordx8('s[8:15]', 's[0:1]', 's4')
    a.s_add_u32('s4', 's4', 32)
    a.s_load_dwordx2('s[48:49]', 's[0:1]', 's4')
    a.s_load_dwordx4('s[56:59]', 's[0:1]', 80)
    a.s_load_dwordx2('s[6:7]', 's[0:1]', 96)
    a.s_and_b32('s3', 's3', 3)
    a.s_lshl_b32('s3', 's3', 3)
    a.s_lshr_b32('s4', 's2', 3)
    a.s_and_b32('s5', 's4', 7)
    a.s_or_b32('s37', 's3', 's5')
    a.s_lshr_b32('s38', 's4', 3)
    a.v_lshrrev_b32('v1', 6, 'v0')
    a.v_readfirstlane_b32('s39', 'v1')
    a.v_and_b32('v1', 63, 'v0')
    a.s_lshr_b32('s40', 's37', 2)
    a.s_and_b32('s41', 's37', 3)
    a.s_cmp_lt_u32('s39', 4); a.s_cbranch_scc1('L_compute')

    a.s_sub_u32('s42', 's39', 4)
    st = Stamps(a); st.stamp('start')
    ring_setup(a, 's42', 8)
    a.s_waitcnt('lgkmcnt(0)')
    srd(a, 20, 14, 15, 640*6144*2)
    srd(a, 16, 8, 9, 512*640*2)
    vq = Q(a, 'vmcnt', 63)
    lq = Q(a, 'lgkmcnt', 15)
    ring = ring_items(a, vq, 8)
    CS = OPT['CSTAGES']
    rpos = [0]
    def issue_ring(n, maxstage):
        k = 0
        while k < n and rpos[0] < len(ring) and ring[rpos[0]][0] <= maxstage:
            ring[rpos[0]][1](); rpos[0] += 1; k += 1
        return k
    issue_ring(10, 0)
    for k in range(CS): ring_advance(a)
    rpos[0] += 10*CS
    srd(a, 24, 10, 11, 16*32*12288)
    srd(a, 28, 12, 13, 16*32*12288)
    srd(a, 52, 48, 49, 6144*640*2)
    issue_ring(OPT['PRE'] - 10, 3)
    srd(a, 32, 6, 7, WS_SIZE)
    srd(a, 60, 58, 59, 256)
    srd(a, 56, 56, 57, 16*32*1280*2)
    if OPT['TLBW']:
        a.v_lshlrev_b32('v2', 20, 'v1')
        a.buffer_load_dword('v200', 'v2', 's[20:23]', 0, mods='offen');
        a.buffer_load_dword('v201', 'v2', 's[52:55]', 0, mods='offen')
        a.buffer_load_dword('v202', 'v2', 's[32:35]', 0, mods='offen')
        a.buffer_load_dword('v203', 'v2', 's[24:27]', 0, mods='offen')
        a.buffer_load_dword('v204', 'v2', 's[28:31]', 0, mods='offen')
        a.buffer_load_dword('v205', 'v2', 's[56:59]', 0, mods='offen')
        for k in range(6): vq.issue(('T',))
    KVO = 21; KS = 64; VS = 112
    a.s_mov_b32('s5', 2731)
    for b3 in range(3):
        a.v_add_u32('v2', 64*b3, 'v1')
        a.v_mul_lo_u32('v3', 'v2', 's5'); a.v_lshrrev_b32('v3', 17, 'v3')
        a.v_xor_b32('v4', 'v2', 'v3'); a.v_lshlrev_b32(vr(KVO+b3), 4, 'v4')
        a.v_xor_b32('v4', 4, 'v4'); a.v_lshlrev_b32(vr(KVO+3+b3), 4, 'v4')
        a.v_and_b32('v3', 1, 'v3'); a.v_lshlrev_b32('v3', 2, 'v3'); a.v_xor_b32('v4', 'v2', 'v3'); a.v_lshlrev_b32(vr(KVO+6+b3), 4, 'v4')
    a.s_lshl_b32('s3', 's38', 2); a.s_add_u32('s3', 's3', 's42'); a.s_lshl_b32('s3', 's3', 5); a.s_add_u32('s3', 's3', 's37')
    a.s_mul_i32('s48', 's3', 12288); a.s_add_u32('s49', 's48', 6144)
    kvn = [0]
    def kvload():
        idx = kvn[0]; kvn[0] += 1
        if OPT['NOKV']: return
        isv, i = divmod(idx, 12)
        aa, b3 = divmod(i, 3)
        vo = (KVO+6+b3) if isv else ((KVO if aa % 2 == 0 else KVO+3) + b3)
        a.buffer_load_dwordx4(vr((VS if isv else KS)+4*i, 4), vr(vo), 's[28:31]' if isv else 's[24:27]', sr(48 + (aa >> 1)), mods=M('offen', offm((aa & 1)*3072), OPT['NT_KV']))
        vq.issue(('KV', isv))
    a.v_lshlrev_b32('v20', 4, 'v1')
    a.s_mul_i32('s3', 's42', 12288); a.s_add_u32('s4', 's3', KBASE); a.v_add_u32('v30', 's4', 'v20')
    a.s_cmp_eq_u32('s42', 3); a.s_cselect_b32('s4', 102400, 's3'); a.v_add_u32('v31', 's4', 'v20')
    WV = 32
    a.s_mov_b32('s5', 3277)
    a.s_mul_i32('s3', 's40', 768*1280); a.s_mul_i32('s4', 's41', 320); a.s_add_u32('s3', 's3', 's4')
    a.s_mul_i32('s4', 's42', 16*1280); a.s_add_u32('s3', 's3', 's4')
    a.s_mov_b32('s4', 1280)
    for b in range(5):
        a.v_add_u32('v2', 64*b, 'v1')
        a.v_mul_lo_u32('v3', 'v2', 's5'); a.v_lshrrev_b32('v3', 16, 'v3')
        a.v_mul_u32_u24('v4', 20, 'v3'); a.v_sub_u32('v4', 'v2', 'v4')
        a.v_mul_lo_u32('v3', 'v3', 's4'); a.v_lshl_add_u32('v3', 'v4', 4, 'v3')
        a.v_add_u32(vr(WV+b), 's3', 'v3')
    a.s_mul_i32('s50', 's42', 5120)
    a.s_mul_i32('s51', 's41', 3)
    def issue_wo(sg):
        a.s_mul_i32('s3', 's51', 64*1280)
        for b in range(5):
            a.s_add_u32('m0', 's50', hex(WSLOT[sg] + b*1024))
            a.buffer_load_dwordx4(vr(WV+b), 's[52:55]', 's3', mods=M('offen', OPT['NT_WO'], 'lds')); vq.issue(('W', sg))
        a.s_add_u32('s51', 's51', 1); a.s_cmp_eq_u32('s51', 12); a.s_cselect_b32('s51', 0, 's51')
    def prefetch_wo(k, base):
        if k < 2:
            a.s_add_u32('s3', 's51', 's38'); a.s_add_u32('s3', 's3', 3 + 4*k - base + 12)
        else:
            a.s_add_u32('s3', 's51', 11 - base + 12)
        for _ in range(3):
            a.s_cmp_ge_u32('s3', 12); a.s_cselect_b32('s4', 12, 0); a.s_sub_u32('s3', 's3', 's4')
        a.s_mul_i32('s3', 's3', 64*1280)
        for b in range(5):
            a.buffer_load_dwordx4(vr(160+4*(5*k+b), 4), vr(WV+b), 's[52:55]', 's3', mods=M('offen', OPT['NT_WO'])); vq.issue(('PF',))
    for k in range(OPT['KV_PRE']): kvload()
    st.stamp('pre')
    vq.wait([('Q', 0)]); st.stamp('q0'); a.s_barrier()
    for i in range(0, 9):
        if i in (2, 4, 6, 8): st.stamp(f'B{i}')
        budget = OPT['BUDGET']
        n = issue_ring(budget, min(9, i+2)); budget -= n
        if i >= OPT['KV_IT0']:
            k = 0
            while k < OPT['KVQ'] and kvn[0] < 24 and budget > 0: kvload(); k += 1; budget -= 1
        n = issue_ring(max(budget, 0), min(9, i+3)); budget -= n
        while budget > 0 and kvn[0] < 24 and i >= OPT['KV_IT0'] and rpos[0] == len(ring): kvload(); budget -= 1
        if i == 7:
            while kvn[0] < 24: kvload()
        if OPT['WO_PF'] and i == OPT['WO_PF_IT']: prefetch_wo(0, 0); prefetch_wo(1, 0); prefetch_wo(2, 0)
        if i == 8:
            issue_wo(0)
            vq.wait([('KV', 0)])
            for k in range(12):
                a.ds_write_b128('v30', vr(KS+4*k, 4), mods=offm(k*1024))
            a.s_waitcnt('lgkmcnt(0)')
        vq.wait([('Q', i+1)])
        a.s_barrier()
    assert rpos[0] == len(ring) and kvn[0] == 24
    st.stamp('B9')
    vq.wait([('KV', 1)])
    for k in range(12):
        a.ds_write_b128('v31', vr(VS+4*k, 4), mods=offm(k*1024))
    a.s_waitcnt('lgkmcnt(0)')
    a.s_barrier()
    st.stamp('B10')
    issue_wo(1); issue_wo(2)
    vq.wait([('W', 0)])
    a.s_barrier()
    st.stamp('B11')
    issue_wo(3); issue_wo(4); issue_wo(5); issue_wo(6); issue_wo(7)
    vq.wait([('W', 2)])
    a.s_barrier()
    vq.wait([('W', 4)])
    a.s_barrier()
    st.stamp('C1')
    issue_wo(8); issue_wo(9); issue_wo(10)
    vq.wait([('W', 7)])
    a.s_barrier()
    issue_wo(11)
    vq.wait([('W', 8)])
    a.s_barrier()
    vq.waitall()
    a.s_barrier()
    get_nonce(a, 'v2', 's43', 'ld')
    a.s_lshl_b32('s3', 's36', 2); a.s_add_u32('s3', 's3', 's38'); a.s_lshl_b32('s3', 's3', 2); a.s_add_u32('s3', 's3', 's41')
    a.s_lshr_b32('s4', 's40', 1)
    a.s_lshl_b32('s5', 's3', 2); a.s_add_u32('s5', 's5', 's4'); a.s_lshl_b32('s5', 's5', 7); a.s_add_u32('s44', 's5', hex(FP_OFF))
    a.s_and_b32('s5', 's40', 1); a.s_mul_i32('s5', 's5', 5)
    a.s_add_u32('s45', 's5', 's42')
    a.s_mul_i32('s46', 's3', 8*40960); a.s_mul_i32('s47', 's4', 10240); a.s_add_u32('s46', 's46', 's47'); a.s_add_u32('s46', 's46', hex(P_OFF))
    a.s_lshl_b32('s47', 's38', 2); a.s_add_u32('s47', 's47', 's4'); a.s_mul_i32('s47', 's47', 32*2560)
    a.s_mul_i32('s3', 's36', 1280); a.s_add_u32('s47', 's47', 's3'); a.s_mul_i32('s3', 's41', 320); a.s_add_u32('s47', 's47', 's3')
    a.v_and_b32('v2', 31, 'v1'); a.v_mul_u32_u24('v2', 2560, 'v2'); a.v_lshrrev_b32('v3', 5, 'v1'); a.v_lshl_add_u32('v2', 'v3', 4, 'v2')
    a.v_and_b32('v4', 7, 'v1'); a.v_lshlrev_b32('v4', 2, 'v4')
    a.s_barrier()
    st.stamp('D')
    a.s_mov_b32('s50', 0)
    a.label('L_pollP')
    a.buffer_load_dword('v5', 'v4', 's[32:35]', 's44', mods='offen sc1')
    a.s_waitcnt('vmcnt(0)')
    a.v_cmp_ne_u32('vcc', 's43', 'v5')
    a.s_add_u32('s50', 's50', 1)
    a.s_cmp_gt_u32('s50', OPT['SPIN_MAX']); a.s_cbranch_scc1('L_pollP_done')
    a.s_cmp_lg_u64('vcc', 0); a.s_cbranch_scc1('L_pollP')
    a.label('L_pollP_done')
    st.stamp('polled')
    def reduce_load(stu, base):
        a.s_lshl_b32('s3', stu, 10); a.s_add_u32('s3', 's3', 's46')
        for kk in range(8):
            a.buffer_load_dwordx4(vr(base+4*kk, 4), 'v20', 's[32:35]', 's3', mods='offen sc1')
            if kk < 7: a.s_add_u32('s3', 's3', 40960)
    def reduce_sum(stu, base, first_wait, dst):
        for kk in range(8):
            a.s_waitcnt(f'vmcnt({first_wait-kk})')
            for i in range(4):
                src = vr(base+4*kk+i)
                if kk == 0:
                    a.v_lshlrev_b32(vr(8+2*i), 16, src); a.v_and_b32(vr(9+2*i), '0xffff0000', src)
                else:
                    a.v_lshlrev_b32('v16', 16, src); a.v_and_b32('v17', '0xffff0000', src)
                    a.v_add_f32(vr(8+2*i), vr(8+2*i), 'v16'); a.v_add_f32(vr(9+2*i), vr(9+2*i), 'v17')
        for i in range(4): a.v_cvt_pk_bf16_f32(vr(dst+i), vr(8+2*i), vr(9+2*i))
        a.s_lshl_b32('s3', stu, 5); a.s_add_u32('s3', 's3', 's47')
        a.buffer_store_dwordx4(vr(dst, 4), 'v2', 's[56:59]', 's3', mods='offen')
    a.s_cmp_eq_u32('s42', 0); a.s_cbranch_scc1('L_red2')
    reduce_load('s45', 64); reduce_sum('s45', 64, 7, 24)
    a.s_branch('L_red_done')
    a.label('L_red2')
    a.s_add_u32('s50', 's45', 4)
    reduce_load('s45', 64); reduce_load('s50', 96)
    reduce_sum('s45', 64, 15, 24)
    reduce_sum('s50', 96, 8, 28)
    a.label('L_red_done')
    if OPT['INSTR']:
        st.stamp('red'); a.s_waitcnt('vmcnt(0)'); st.stamp('end')
        a.s_cmp_eq_u32('s42', 0); a.s_cbranch_scc0('L_ld_end'); st.flush(0); a.label('L_ld_end')
    a.s_endpgm()

    a.label('L_compute')
    AF = 32; XF = 56; ACC = 64; SA = 32; PP = 56
    QB = 208; KF = 160; VF = 160; OP = 208
    st = Stamps(a)
    vq = Q(a, 'vmcnt', 63)
    a.s_waitcnt('lgkmcnt(0)')
    srd(a, 32, 6, 7, WS_SIZE)
    srd(a, 60, 58, 59, 256)
    a.v_mov_b32('v30', hex(N_OFF))
    a.s_or_b32('s50', 's2', 's39'); a.s_cmp_eq_u32('s50', 0); a.s_cbranch_scc0('L_no_nonce0')
    a.buffer_load_dword('v31', 'v30', 's[32:35]', 0, mods='offen sc1')
    a.label('L_no_nonce0')
    if OPT['CSTAGES']:
        ring_setup(a, 's39', 160)
        srd(a, 20, 14, 15, 640*6144*2)
        srd(a, 16, 8, 9, 512*640*2)
        cring = ring_items(a, vq, 160)
        ring_advance(a)
        for (s_, f_) in cring:
            if 1 <= s_ <= OPT['CSTAGES']: f_()
    a.s_cmp_eq_u32('s50', 0); a.s_cbranch_scc0('L_no_nonce')
    a.s_waitcnt(f"vmcnt({10*OPT['CSTAGES']})")
    a.v_add_u32('v31', hex(NONCE_C), 'v31')
    a.v_cmp_eq_u32('vcc', 0, 'v31')
    a.v_mov_b32('v4', hex(NONCE_C))
    a.v_cndmask_b32('v31', 'v31', 'v4', 'vcc')
    a.s_mov_b64('exec', 1)
    a.buffer_store_dword('v31', 'v30', 's[32:35]', 0, mods='offen sc1')
    a.v_mov_b32('v4', 0)
    a.buffer_store_dword('v31', 'v4', 's[60:63]', 0, mods='offen sc1')
    a.s_mov_b64('exec', -1)
    a.label('L_no_nonce')
    T = 32
    hf, G2, r_, d48, t1, t2_, t3, t4 = [vr(T+i) for i in range(8)]
    a.v_lshrrev_b32(hf, 5, 'v1'); a.v_bfe_u32(G2, 'v1', 4, 1); a.v_bfe_u32(r_, 'v1', 2, 2)
    a.v_and_b32(d48, 1, 'v1'); a.v_lshlrev_b32(d48, 1, d48); a.v_bfe_u32(t1, 'v1', 1, 1); a.v_or_b32(d48, d48, t1)
    a.v_lshl_add_u32(d48, G2, 2, d48); a.v_lshlrev_b32(d48, 3, d48)
    a.v_lshrrev_b32(t1, 1, r_); a.v_lshlrev_b32(t1, 6, t1); a.v_add_u32(t1, d48, t1)
    a.v_lshl_add_u32(t2_, hf, 3, r_)
    a.v_lshlrev_b32(t3, 7, t2_); a.v_add_u32('v2', t3, t1)
    a.v_xor_b32('v3', 64, 'v2')
    a.v_add_u32('v4', hex(2*SLOT), 'v2'); a.v_add_u32('v5', hex(2*SLOT), 'v3')
    a.v_mul_u32_u24('v30', 320, t2_); a.v_add_u32('v30', 'v30', d48)
    a.v_and_b32(t3, 31, 'v1'); a.v_bfe_u32(t4, 'v1', 1, 3); a.v_xor_b32(t4, t4, hf); a.v_lshlrev_b32(t4, 4, t4)
    a.s_lshl_b32('s3', 's39', 12); a.s_add_u32('s3', 's3', 24576)
    a.v_lshl_add_u32(G2, t3, 7, t4); a.v_add_u32('v6', 's3', G2)
    for s in range(1, 4): a.v_xor_b32(vr(6+s), 32*s, 'v6')
    for s in range(4): a.v_add_u32(vr(10+s), hex(2*SLOT), vr(6+s))
    a.s_mul_i32('s3', 's39', 12288); a.s_add_u32('s4', 's3', KBASE)
    a.s_mov_b32('s5', 384)
    a.v_mul_lo_u32(G2, t3, 's5'); a.v_add_u32(G2, G2, t4); a.v_add_u32('v14', 's4', G2)
    for s in range(1, 4): a.v_xor_b32(vr(14+s), 32*s, 'v14')
    a.s_cmp_eq_u32('s39', 3); a.s_cselect_b32('s4', 102400, 's3')
    a.v_lshl_add_u32(G2, hf, 2, r_); a.v_mul_lo_u32(G2, G2, 's5'); a.v_add_u32(G2, G2, t1); a.v_add_u32('v18', 's4', G2)
    a.v_xor_b32('v19', 64, 'v18')
    a.v_lshlrev_b32('v20', 4, 'v1')
    a.s_lshl_b32('s3', 's36', 4); a.s_lshl_b32('s4', 's38', 2); a.s_add_u32('s3', 's3', 's4'); a.s_add_u32('s3', 's3', 's39'); a.s_lshl_b32('s3', 's3', 5)
    a.s_add_u32('s4', 's3', 's37'); a.s_mul_i32('s44', 's4', 12288)
    a.s_lshl_b32('s4', 's40', 2); a.s_add_u32('s3', 's3', 's4'); a.s_mul_i32('s45', 's3', 12288)
    a.s_lshl_b32('s3', 's36', 2); a.s_add_u32('s3', 's3', 's38'); a.s_lshl_b32('s4', 's3', 3); a.s_add_u32('s4', 's4', 's40'); a.s_lshl_b32('s4', 's4', 2); a.s_add_u32('s4', 's4', 's39')
    a.s_lshl_b32('s4', 's4', 7); a.s_add_u32('s48', 's4', hex(FO_OFF))
    a.s_lshl_b32('s4', 's41', 2); a.s_add_u32('s49', 's48', 's4')
    a.s_lshl_b32('s3', 's3', 2); a.s_add_u32('s3', 's3', 's41')
    a.s_lshl_b32('s4', 's3', 3); a.s_add_u32('s4', 's4', 's40'); a.s_mul_i32('s4', 's4', 40960); a.s_mul_i32('s5', 's39', 10240); a.s_add_u32('s4', 's4', 's5'); a.s_add_u32('s52', 's4', hex(P_OFF))
    a.s_lshl_b32('s4', 's3', 2); a.s_add_u32('s4', 's4', 's39'); a.s_lshl_b32('s4', 's4', 7); a.s_lshl_b32('s5', 's40', 2); a.s_add_u32('s4', 's4', 's5'); a.s_add_u32('s43', 's4', hex(FP_OFF))

    q = Q(a, 'lgkmcnt', 15)
    def rdA(t, n):
        if OPT['NOMF'] > 1 and n > 0: return
        st_, s = divmod(n, 4); slot = st_ % 4
        base = (2 if slot < 2 else 4) + (t % 2)
        off = (slot % 2) * SLOT + (t//2)*8192 + s*2048
        for e in range(2):
            a.ds_read_b64_tr_b16(vr(AF+4*t+2*e, 2), vr(base), mods=offm(off+e*512))
            q.issue(('A', t, n))
    def rdX(n):
        st_, s = divmod(n, 4); slot = st_ % 4
        base = (6 if slot < 2 else 10) + s
        a.ds_read_b128(vr(XF+4*(n % 2), 4), vr(base), mods=offm((slot % 2)*SLOT))
        q.issue(('X', n))
    def mf(t, n):
        if OPT['NOMF'] and n > 0: return
        q.wait([('A', t, n), ('X', n)])
        a.v_mfma_f32_32x32x16_bf16(vr(ACC+16*t, 16), vr(AF+4*t, 4), vr(XF+4*(n % 2), 4), '0' if n == 0 else vr(ACC+16*t, 16))
    def rdK(s12):
        aa, sp = divmod(s12, 4)
        a.ds_read_b128(vr(KF+4*s12, 4), vr(14+sp), mods=offm(aa*128)); q.issue(('K', s12))
    def cvtQ(t):
        for i in range(8): a.v_cvt_pk_bf16_f32(vr(QB+8*t+i), vr(ACC+16*t+2*i), vr(ACC+16*t+2*i+1))
    def rdV(t, u):
        for e in range(2):
            a.ds_read_b64_tr_b16(vr(VF+8*t+4*u+2*e, 2), vr(18+(t % 2)), mods=offm(u*6144+e*3072+(t//2)*128))
            q.issue(('V', t, u))
    st.stamp('pre')
    a.s_barrier()
    st.stamp('B0')
    rdX(0)
    for t in range(6): rdA(t, 0)
    for n in range(40):
        s = n % 4
        extra = []
        if n in (36, 37, 38): extra = [(lambda i=i: rdK(i)) for i in range((n-36)*4, (n-36)*4+4)]
        if s < 3:
            rdX(n+1)
            for t in range(6):
                mf(t, n); rdA(t, n+1)
                if t < len(extra): extra[t]()
        else:
            for t in range(3): mf(t, n)
            q.waitall()
            vq.wait([('Q', n//4 + 1)])
            a.s_barrier()
            if n < 39:
                rdX(n+1); rdA(0, n+1); rdA(1, n+1)
                mf(3, n); rdA(2, n+1); mf(4, n); rdA(3, n+1); mf(5, n); rdA(4, n+1); rdA(5, n+1)
            else:
                a.v_mov_b32('v2', 0)
                a.buffer_load_dword('v5', 'v2', 's[60:63]', 0, mods='offen sc1')
                mf(3, n); cvtQ(0); mf(4, n); cvtQ(1); mf(5, n); cvtQ(2)
    st.stamp('qdone')
    def mS(s12):
        a.v_mfma_f32_32x32x16_bf16(vr(SA, 16), vr(KF+4*s12, 4), vr(QB+4*s12, 4), '0' if s12 == 0 else vr(SA, 16))
    order = [(t, u) for t in range(6) for u in range(2)]
    mS(0); mS(1); cvtQ(3); mS(2); mS(3); cvtQ(4); mS(4); mS(5); cvtQ(5)
    for s12 in range(6, 12): mS(s12)
    for k in range(7): rdV(*order[k])
    S = lambda j: vr(SA+j)
    m0_, m1_ = 'v48', 'v49'
    a.v_max3_f32(m0_, S(0), S(1), S(2))
    for j in range(3, 15, 2): a.v_max3_f32(m0_, m0_, S(j), S(j+1))
    a.v_max_f32(m0_, m0_, S(15))
    a.v_mov_b32(m1_, m0_)
    a.v_permlane32_swap_b32(m0_, m1_)
    a.v_max_f32(m0_, m0_, m1_)
    c = 192 ** -0.5 * 1.4426950408889634
    cbits = struct.unpack('<I', struct.pack('<f', c))[0]
    a.s_mov_b32('s46', hex(cbits))
    a.v_mul_f32(m0_, 's46', m0_)
    for j in range(16): a.v_fma_f32(S(j), S(j), 's46', '-' + m0_)
    for j in range(16): a.v_exp_f32(S(j), S(j))
    for k in range(7, 12): rdV(*order[k])
    a.v_add_f32('v50', S(0), S(1)); a.v_add_f32('v51', S(2), S(3))
    for j in range(4, 16, 2):
        a.v_add_f32('v50', 'v50', S(j)); a.v_add_f32('v51', 'v51', S(j+1))
    a.v_add_f32('v50', 'v50', 'v51')
    a.v_mov_b32('v51', 'v50')
    a.v_permlane32_swap_b32('v50', 'v51')
    a.v_add_f32('v50', 'v50', 'v51')
    a.v_rcp_f32('v50', 'v50')
    for j in range(16): a.v_mul_f32(S(j), S(j), 'v50')
    for i in range(8): a.v_cvt_pk_bf16_f32(vr(PP+i), S(2*i), S(2*i+1))
    st.stamp('smax')
    a.s_waitcnt('vmcnt(0)'); vq.q = []
    a.v_readfirstlane_b32('s47', 'v5')
    a.s_cmp_lg_u32('s47', 0); a.s_cbranch_scc1('L_have_nonce')
    get_nonce(a, 'v5', 's47', 'cp')
    a.label('L_have_nonce')
    a.v_mov_b32('v2', 'v30'); a.v_add_u32('v3', hex(61440), 'v30'); a.v_add_u32('v4', hex(122880), 'v30')
    ACC2 = 64
    seq = [(t, n2) for n2 in range(36) for t in range(5)] + [(t, n2) for t in range(5) for n2 in range(36, 48)]
    pos = {p: i for i, p in enumerate(seq)}
    def afbuf(t, n2): return pos[(t, n2)] % 5
    def rdW(t, n2):
        sg, s = divmod(n2, 4)
        ad = WSLOT[sg]; b = ad // 61440; o = ad - b*61440
        off = o + s*5120 + t*64
        for e in range(2):
            a.ds_read_b64_tr_b16(vr(AF+4*afbuf(t, n2)+2*e, 2), vr(2+b), mods=offm(off+e*1280))
            q.issue(('W', t, n2))
    R2 = [144, 148, 152, 156, 52, 8, 12, 16, 24, 28, 56, 60]
    def bfrag(n2):
        hr, s12 = divmod(n2, 12)
        if hr == 0 or hr == 3: return OP + 4*s12
        if hr == 1: return 160 + 4*s12
        return R2[s12]
    def pv(t, u):
        q.wait([('V', t, u)])
        a.v_mfma_f32_32x32x16_bf16(vr(ACC+16*t, 16), vr(VF+8*t+4*u, 4), vr(PP+4*u, 4), '0' if u == 0 else vr(ACC+16*t, 16))
    def cvt_store(dst, acc, sbase, f0):
        for i in range(8): a.v_cvt_pk_bf16_f32(vr(dst+i), vr(acc+2*i), vr(acc+2*i+1))
        for u in range(2):
            f = f0+u
            so = sbase; off = f*1024
            if off >= 4096:
                a.s_add_u32('s46', sbase, hex(off & ~4095)); so = 's46'; off &= 4095
            a.buffer_store_dwordx4(vr(dst+4*u, 4), 'v20', 's[32:35]', so, mods=M('offen', offm(off), 'sc1'))
            vq.issue(('ST',))
    def cso(t): cvt_store(OP+8*t, ACC+16*t, 's44', 2*t)
    pv(0, 0); pv(0, 1); pv(1, 0); pv(1, 1)
    cso(0)
    pv(2, 0); pv(2, 1); cso(1)
    pv(3, 0); pv(3, 1); cso(2)
    pv(4, 0); pv(4, 1); cso(3)
    pv(5, 0); pv(5, 1); cso(4)
    cso(5)
    st.stamp('ostored')
    q.waitall(); a.s_barrier()
    for i in range(5): rdW(*seq[i])
    def set_flag(saddr):
        a.s_waitcnt('vmcnt(0)'); vq.q = []
        a.s_mov_b64('exec', 1)
        a.v_mov_b32('v5', 's47'); a.v_mov_b32('v6', 0)
        a.buffer_store_dword('v5', 'v6', 's[32:35]', saddr, mods='offen sc1')
        a.s_mov_b64('exec', -1)
        vq.issue(('F',))
    BAR = {pos[(0, 4)]: 'B11b', pos[(0, 12)]: 'C1', pos[(0, 20)]: 'C2', pos[(0, 32)]: 'C3a', pos[(0, 36)]: 'C3b'}
    nxt = 5
    done_bar = set()
    pend = {}
    def ldR(hr, s12):
        if s12 % 4 == 0:
            a.s_add_u32('s3', 's41', hr); a.s_and_b32('s3', 's3', 3); a.s_mul_i32('s3', 's3', 12288); a.s_add_u32('s3', 's3', 's45')
            if s12: a.s_add_u32('s3', 's3', s12*1024)
            a.s_mov_b32(f's{53+hr}', 's3')
        a.buffer_load_dwordx4(vr(bfrag(12*hr+s12), 4), 'v20', 's[32:35]', f's{53+hr}', mods=M('offen', offm((s12 % 4)*1024), 'sc1'))
        vq.issue(('R', 12*hr+s12))
    rl = [(hr, s12) for hr in range(1, 4) for s12 in range(12)]
    rli = 0
    for i, (t, n2) in enumerate(seq):
        if i == pos[(0, 12)]:
            a.s_mov_b32('s50', 0)
            a.s_waitcnt('vmcnt(0)'); vq.q = []
            a.v_cmp_ne_u32('vcc', 's47', 'v6')
            a.s_cmp_lg_u64('vcc', 0); a.s_cbranch_scc0('L_pollO_done')
            a.label('L_pollO')
            a.buffer_load_dword('v6', 'v5', 's[32:35]', 's48', mods='offen sc1')
            a.s_waitcnt('vmcnt(0)')
            a.v_cmp_ne_u32('vcc', 's47', 'v6')
            a.s_add_u32('s50', 's50', 1)
            a.s_cmp_gt_u32('s50', OPT['SPIN_MAX']); a.s_cbranch_scc1('L_pollO_done')
            a.s_cmp_lg_u64('vcc', 0); a.s_cbranch_scc1('L_pollO')
            a.label('L_pollO_done')
            st.stamp('polled')
            for k in range(12): ldR(*rl[rli]); rli += 1
            q.waitall(); a.s_barrier(); done_bar.add('C1'); st.stamp('C1')
            while nxt - 5 < i: rdW(*seq[nxt]); nxt += 1
        q.wait([('W', t, n2)])
        if vq.has(('R', n2)): vq.wait([('R', n2)])
        a.v_mfma_f32_32x32x16_bf16(vr(ACC2+16*t, 16), vr(AF+4*afbuf(t, n2), 4), vr(bfrag(n2), 4), '0' if n2 == 0 else vr(ACC2+16*t, 16))
        if i == pos[(0, 12)]: st.stamp('r1first')
        if n2 == 47 and t < 4: pend[i+3] = t
        while nxt < len(seq) and nxt - 5 <= i:
            if nxt in BAR and BAR[nxt] not in done_bar:
                if i < nxt - 3 or BAR[nxt] == 'C1': break
                q.waitall(); a.s_barrier(); done_bar.add(BAR[nxt])
                if BAR[nxt] in ('C1', 'C2', 'C3b'): st.stamp(BAR[nxt])
            rdW(*seq[nxt]); nxt += 1
        if i >= pos[(0, 12)] and rli < len(rl) and (i % 2 == 0):
            hr, s12 = rl[rli]
            ldR(hr, s12); rli += 1
        if i == OPT['FLAG_AT']: set_flag('s49')
        if i == OPT['POLL_AT']:
            a.v_and_b32('v5', 3, 'v1'); a.v_lshlrev_b32('v5', 2, 'v5')
            a.buffer_load_dword('v6', 'v5', 's[32:35]', 's48', mods='offen sc1'); vq.issue(('P',))
        if i in pend: cvt_store(160+8*pend[i], ACC2+16*pend[i], 's52', 2*pend[i])
    assert len(done_bar) == 5 and rli == len(rl)
    cvt_store(160+32, ACC2+64, 's52', 8)
    st.stamp('mdone')
    a.s_barrier()
    set_flag('s43')
    if OPT['INSTR']:
        st.stamp('flag')
        a.s_cmp_eq_u32('s39', 0); a.s_cbranch_scc0('L_c_end'); st.flush(1); a.label('L_c_end')
    a.s_endpgm()
    a.label('L_end')
    a.s_endpgm()

def build(path):
    hdr = open('cdna_kernels/%s.s.ref' % NAME).read().split('\n')
    head = [l for l in hdr if l.startswith(';') and '@launch' not in l and 'Override' not in l and 'grid=ceil' not in l]
    out = '\n'.join(head) + '\n'
    out += '; @launch grid=(256,1,1) block=(512,1,1) lds=163840\n'
    out += '.amdgcn_target "amdgcn-amd-amdhsa--gfx950"\n.text\n'
    a = Asm(); gen(a); out += a.finalize()
    out += f""".section .rodata,"a"
.p2align 6
.amdhsa_kernel {KN}
  .amdhsa_next_free_vgpr 256
  .amdhsa_next_free_sgpr 102
  .amdhsa_accum_offset 256
  .amdhsa_group_segment_fixed_size 0
  .amdhsa_kernarg_size 104
  .amdhsa_user_sgpr_count 2
  .amdhsa_user_sgpr_kernarg_segment_ptr 1
  .amdhsa_system_sgpr_workgroup_id_x 1
.end_amdhsa_kernel
"""
    open(path, 'w').write(out)

if __name__ == '__main__':
    path = sys.argv[1]
    for arg in sys.argv[2:]:
        k, v = arg.split('=')
        OPT[k] = int(v) if isinstance(OPT[k], int) else v
    build(path)
```

```python
import sys, struct
from asmlib import Asm, vr, sr

NAME = "concat_heads__gqa_block_cached__mha_block_cached__near_ridge"
KN = NAME + "_kernel"
OPT = dict(NT_KV='', NT_W='', NT_X='', NT_WO='', INSTR=0, SPIN_MAX=200000, CSTAGES=2, PL_K=1, PC_K=9, ROTQ=0, ROTW=0, PUB_K=1)
PX_OFF = 0
P_OFF = 16 << 20
P_BYTES = 256*40960
FP_OFF = 28 << 20
N_OFF = FP_OFF + 128*128
WS_SIZE = N_OFF + 128
SLOT = 40960
T_OFF = 64 << 20
NONCE_C = 0x9E3779B9
NST = 22

class Q:
    def __init__(self, a, name, mx): self.a = a; self.q = []; self.name = name; self.mx = mx
    def issue(self, tag): self.q.append(tag)
    def has(self, tag): return tag in self.q
    def wait(self, tags):
        idx = -1
        for i, t in enumerate(self.q):
            if t in tags: idx = i
        if idx < 0: return
        n = min(len(self.q) - 1 - idx, self.mx)
        self.a.s_waitcnt(f'{self.name}({n})')
        self.q = self.q[len(self.q) - n:] if n else []
    def waitall(self):
        self.a.s_waitcnt(f'{self.name}(0)'); self.q = []

class Stamps:
    def __init__(self, a, base_sgpr=64): self.a = a; self.n = 0; self.base = base_sgpr; self.names = []
    def stamp(self, name=''):
        if not OPT['INSTR']: return
        assert self.n < 16, self.names
        self.a.s_memrealtime(sr(self.base+2*self.n, 2)); self.n += 1; self.names.append(name)
    def flush(self, slot):
        if not OPT['INSTR']: return
        a = self.a
        print(f'stamps slot {slot}:', ' '.join(self.names), file=sys.stderr)
        a.s_waitcnt('lgkmcnt(0)')
        a.s_mov_b32('s96', 's6'); a.s_and_b32('s97', 's7', '0xffff'); a.s_mov_b32('s98', hex(T_OFF + (4 << 20))); a.s_mov_b32('s99', '0x20000')
        a.s_lshl_b32('s3', 's2', 9); a.s_add_u32('s3', 's3', hex(T_OFF + slot*128))
        a.v_mov_b32('v2', 0)
        a.s_mov_b64('exec', 1)
        for i in range(self.n):
            a.v_mov_b32('v3', sr(self.base+2*i))
            a.buffer_store_dword('v3', 'v2', 's[96:99]', 's3', mods=f'offen offset:{4*i}')
        a.s_mov_b64('exec', -1)

def srd(a, d, lo, hi, size):
    a.s_mov_b32(sr(d), sr(lo)); a.s_and_b32(sr(d+1), sr(hi), '0xffff'); a.s_mov_b32(sr(d+2), hex(size)); a.s_mov_b32(sr(d+3), '0x20000')
def M(*parts): return ' '.join(p for p in parts if p)
def offm(off): return f'offset:{off}' if off else ''

def get_nonce(a, vtmp, sdst, tag):
    L = f'nonce_{tag}'
    a.s_mov_b32('s51', 0)
    a.label(L)
    a.v_mov_b32(vtmp, 0)
    a.buffer_load_dword(vtmp, vtmp, 's[60:63]', 0, mods='offen sc1')
    a.s_waitcnt('vmcnt(0)')
    a.v_readfirstlane_b32(sdst, vtmp)
    a.s_add_u32('s51', 's51', 1)
    a.s_cmp_gt_u32('s51', OPT['SPIN_MAX']); a.s_cbranch_scc1(L + '_done')
    a.s_cmp_eq_u32(sdst, 0); a.s_cbranch_scc1(L)
    a.label(L + '_done')

def ring_setup(a, lw, vb):
    a.v_lshrrev_b32('v2', 3, 'v1')
    a.v_and_b32('v3', 7, 'v1')
    a.v_lshrrev_b32('v4', 1, 'v2'); a.v_and_b32('v5', 1, 'v4'); a.v_lshlrev_b32('v5', 2, 'v5'); a.v_xor_b32('v5', 'v3', 'v5')
    a.v_lshlrev_b32('v5', 4, 'v5')
    a.s_mul_i32('s3', 's37', 384)
    a.s_mul_i32('s4', lw, 16*12288)
    a.s_add_u32('s3', 's3', 's4')
    a.s_mov_b32('s5', 12288)
    a.v_mul_lo_u32('v6', 'v2', 's5')
    a.v_add_u32('v6', 'v6', 'v5')
    a.v_add_u32(vr(vb), 's3', 'v6')
    a.v_add_u32(vr(vb+1), hex(8*12288), vr(vb))
    a.s_lshl_b32('s3', 's38', 7); a.s_lshl_b32('s4', lw, 5); a.s_add_u32('s3', 's3', 's4'); a.s_mul_i32('s3', 's3', 1280)
    a.s_mov_b32('s5', 1280)
    a.v_mul_lo_u32('v6', 'v2', 's5'); a.v_add_u32('v6', 's3', 'v6')
    a.v_xor_b32('v5', 'v3', 'v4'); a.v_lshlrev_b32('v7', 4, 'v5')
    a.v_xor_b32('v5', 4, 'v5'); a.v_lshlrev_b32('v5', 4, 'v5')
    for i in range(4):
        a.v_add_u32(vr(vb+4+i), 'v6', 'v7' if i % 2 == 0 else 'v5')
        if i: a.v_add_u32(vr(vb+4+i), hex(i*8*1280), vr(vb+4+i))
    a.s_lshl_b32('s44', lw, 11)
    a.s_lshl_b32('s45', lw, 12)

def q_items(a, vq, vb, s):
    slot = (s % 4) * SLOT
    items = []
    for rg in range(2):
        for t2 in range(3):
            def f(rg=rg, t2=t2, first=(rg == 0 and t2 == 0)):
                if first:
                    if OPT['ROTQ']:
                        a.s_mul_i32('s3', 's38', 5); a.s_lshr_b32('s3', 's3', 1); a.s_add_u32('s3', 's3', s)
                        a.s_cmp_ge_u32('s3', 10); a.s_cselect_b32('s4', 10, 0); a.s_sub_u32('s3', 's3', 's4')
                        a.s_mul_i32('s46', 's3', 64*12288); a.s_lshl_b32('s47', 's3', 7)
                    else:
                        a.s_mov_b32('s46', hex(s*64*12288)); a.s_mov_b32('s47', s*128)
                a.s_add_u32('m0', 's44', hex(slot + t2*8192 + rg*1024 - t2*128))
                a.buffer_load_dwordx4(vr(vb+rg), 's[20:23]', 's46', mods=M('offen', offm(t2*128), OPT['NT_W'], 'lds')); vq.issue(('S', s))
            items.append(f)
    for i in range(4):
        def f(i=i):
            a.s_add_u32('m0', 's45', hex(slot + 24576 + i*1024))
            a.buffer_load_dwordx4(vr(vb+4+i), 's[16:19]', 's47', mods=M('offen', OPT['NT_X'], 'lds')); vq.issue(('S', s))
        items.append(f)
    return items

def gen(a):
    a.raw('.p2align 8'); a.raw(f'.globl {KN}'); a.raw(f'.type {KN},@function'); a.label(KN)
    a.s_cmp_ge_u32('s2', 256); a.s_cbranch_scc1('L_end')
    a.s_and_b32('s3', 's2', 7)
    a.s_lshr_b32('s36', 's3', 2)
    a.s_mul_i32('s4', 's36', 40)
    a.s_load_dwordx8('s[8:15]', 's[0:1]', 's4')
    a.s_add_u32('s4', 's4', 32)
    a.s_load_dwordx2('s[48:49]', 's[0:1]', 's4')
    a.s_load_dwordx4('s[56:59]', 's[0:1]', 80)
    a.s_load_dwordx2('s[6:7]', 's[0:1]', 96)
    a.s_and_b32('s3', 's3', 3)
    a.s_lshl_b32('s3', 's3', 3)
    a.s_lshr_b32('s4', 's2', 3)
    a.s_and_b32('s5', 's4', 7)
    a.s_or_b32('s37', 's3', 's5')
    a.s_lshr_b32('s38', 's4', 3)
    a.v_lshrrev_b32('v1', 6, 'v0')
    a.v_readfirstlane_b32('s39', 'v1')
    a.v_and_b32('v1', 63, 'v0')
    a.s_lshr_b32('s40', 's37', 2)
    a.s_and_b32('s41', 's37', 3)
    a.s_cmp_lt_u32('s39', 4); a.s_cbranch_scc1('L_compute')

    a.s_sub_u32('s42', 's39', 4)
    st = Stamps(a); st.stamp('start')
    ring_setup(a, 's42', 8)
    a.s_waitcnt('lgkmcnt(0)')
    srd(a, 20, 14, 15, 640*6144*2)
    srd(a, 16, 8, 9, 512*640*2)
    vq = Q(a, 'vmcnt', 63)
    for f in q_items(a, vq, 8, 0): f()
    srd(a, 24, 10, 11, 16*32*12288)
    a.s_mov_b32('s5', 3277)
    a.s_lshl_b32('s3', 's38', 2); a.s_add_u32('s3', 's3', 's42'); a.s_lshl_b32('s3', 's3', 5); a.s_add_u32('s3', 's3', 's37'); a.s_mul_i32('s3', 's3', 12288)
    for b in range(5):
        a.v_add_u32('v2', 64*b, 'v1')
        a.v_mul_lo_u32('v3', 'v2', 's5'); a.v_lshrrev_b32('v3', 16, 'v3')
        a.v_mul_u32_u24('v4', 20, 'v3'); a.v_sub_u32('v4', 'v2', 'v4')
        a.v_bfe_u32('v5', 'v3', 2, 2); a.v_xor_b32('v4', 'v4', 'v5')
        a.v_mul_u32_u24('v3', 384, 'v3'); a.v_lshl_add_u32('v3', 'v4', 4, 'v3')
        a.v_add_u32(vr(32+b), 's3', 'v3')
    a.s_mul_i32('s50', 's42', 10240)
    a.s_mov_b32('s46', 16*384)
    for aa in range(2):
        for b in range(5):
            a.s_add_u32('m0', 's50', hex(3*SLOT + aa*5120 + b*1024))
            a.buffer_load_dwordx4(vr(32+b), 's[24:27]', 's46' if aa else 0, mods=M('offen', OPT['NT_KV'], 'lds')); vq.issue(('S', 0))
    srd(a, 28, 12, 13, 16*32*12288)
    srd(a, 52, 48, 49, 6144*640*2)
    srd(a, 32, 6, 7, WS_SIZE)
    srd(a, 60, 58, 59, 256)
    srd(a, 56, 56, 57, 16*32*1280*2)
    WV = 16
    a.s_mov_b32('s5', 3277)
    a.s_mul_i32('s3', 's40', 768*1280); a.s_mul_i32('s4', 's41', 320); a.s_add_u32('s3', 's3', 's4')
    a.s_mul_i32('s4', 's42', 16*1280); a.s_add_u32('s3', 's3', 's4')
    a.s_mov_b32('s4', 1280)
    for b in range(5):
        a.v_add_u32('v2', 64*b, 'v1')
        a.v_mul_lo_u32('v3', 'v2', 's5'); a.v_lshrrev_b32('v3', 16, 'v3')
        a.v_mul_u32_u24('v4', 20, 'v3'); a.v_sub_u32('v4', 'v2', 'v4')
        a.v_mul_lo_u32('v3', 'v3', 's4'); a.v_lshl_add_u32('v3', 'v4', 4, 'v3')
        a.v_add_u32(vr(WV+b), 's3', 'v3')
    VV = 21
    a.v_lshrrev_b32('v2', 3, 'v1'); a.v_and_b32('v3', 7, 'v1'); a.v_lshrrev_b32('v4', 1, 'v2')
    a.v_xor_b32('v5', 'v3', 'v4'); a.v_lshlrev_b32('v7', 4, 'v5'); a.v_xor_b32('v5', 4, 'v5'); a.v_lshlrev_b32('v5', 4, 'v5')
    a.v_mul_u32_u24('v6', 384, 'v2')
    a.s_lshl_b32('s3', 's38', 2); a.s_add_u32('s3', 's3', 's42'); a.s_lshl_b32('s3', 's3', 5); a.s_lshl_b32('s4', 's40', 2); a.s_add_u32('s3', 's3', 's4'); a.s_mul_i32('s3', 's3', 12288)
    a.v_add_u32('v6', 's3', 'v6')
    for i in range(4):
        a.v_add_u32(vr(VV+i), 'v6', 'v7' if i % 2 == 0 else 'v5')
        if i: a.v_add_u32(vr(VV+i), hex(i*8*384), vr(VV+i))
    a.s_mul_i32('s50', 's42', 5120)
    def w_items(s):
        sg = s - 10; hr, sub = divmod(sg, 3)
        slot = (s % 4) * SLOT
        items = []
        for b in range(5):
            def f(b=b):
                if b == 0:
                    a.s_add_u32('s3', 's41', hr); a.s_and_b32('s3', 's3', 3)
                    a.s_mul_i32('s46', 's3', 192*1280); a.s_mul_i32('s47', 's3', 12288)
                    if OPT['ROTW']:
                        a.s_add_u32('s3', 's38', sub)
                        a.s_cmp_ge_u32('s3', 3); a.s_cselect_b32('s4', 3, 0); a.s_sub_u32('s3', 's3', 's4')
                        a.s_cmp_ge_u32('s3', 3); a.s_cselect_b32('s4', 3, 0); a.s_sub_u32('s3', 's3', 's4')
                        a.s_mul_i32('s4', 's3', 64*1280); a.s_add_u32('s46', 's46', 's4')
                        a.s_lshl_b32('s4', 's3', 7); a.s_add_u32('s47', 's47', 's4')
                    else:
                        a.s_add_u32('s46', 's46', hex(64*sub*1280)); a.s_add_u32('s47', 's47', sub*128)
                a.s_add_u32('m0', 's50', hex(slot + b*1024))
                a.buffer_load_dwordx4(vr(WV+b), 's[52:55]', 's46', mods=M('offen', OPT['NT_WO'], 'lds')); vq.issue(('S', s))
            items.append(f)
        for i in range(4):
            def f(i=i):
                a.s_add_u32('m0', 's45', hex(slot + 20480 + i*1024))
                a.buffer_load_dwordx4(vr(VV+i), 's[28:31]', 's47', mods=M('offen', OPT['NT_KV'], 'lds')); vq.issue(('S', s))
            items.append(f)
        return items
    def stage_items(s): return q_items(a, vq, 8, s) if s < 10 else w_items(s)
    CS = OPT['CSTAGES']
    st.stamp('pre')
    vq.wait([('S', 0)]); st.stamp('q0'); a.s_barrier()
    nxt = CS + 1
    for i in range(0, NST-1):
        if i in (2, 4, 6, 8, 10, 12, 15, 18): st.stamp(f'B{i}')
        while nxt <= min(NST-1, i+3) and not (i == 0 and nxt == 3):
            for f in stage_items(nxt): f()
            nxt += 1
        vq.wait([('S', i+1)])
        a.s_barrier()
    get_nonce(a, 'v2', 's43', 'ld')
    a.s_lshl_b32('s3', 's36', 2); a.s_add_u32('s3', 's3', 's38'); a.s_lshl_b32('s3', 's3', 2); a.s_add_u32('s3', 's3', 's41')
    a.s_lshr_b32('s4', 's40', 1)
    a.s_lshl_b32('s5', 's3', 2); a.s_add_u32('s5', 's5', 's4'); a.s_lshl_b32('s5', 's5', 7); a.s_add_u32('s44', 's5', hex(FP_OFF))
    a.s_and_b32('s5', 's40', 1); a.s_mul_i32('s5', 's5', 5)
    a.s_add_u32('s45', 's5', 's42')
    a.s_mul_i32('s46', 's3', 8*40960); a.s_mul_i32('s47', 's4', 10240); a.s_add_u32('s46', 's46', 's47'); a.s_add_u32('s46', 's46', hex(P_OFF))
    a.s_lshl_b32('s47', 's38', 2); a.s_add_u32('s47', 's47', 's4'); a.s_mul_i32('s47', 's47', 32*2560)
    a.s_mul_i32('s3', 's36', 1280); a.s_add_u32('s47', 's47', 's3'); a.s_mul_i32('s3', 's41', 320); a.s_add_u32('s47', 's47', 's3')
    a.v_and_b32('v2', 31, 'v1'); a.v_mul_u32_u24('v2', 2560, 'v2'); a.v_lshrrev_b32('v3', 5, 'v1'); a.v_lshl_add_u32('v2', 'v3', 4, 'v2')
    a.v_and_b32('v4', 7, 'v1'); a.v_lshlrev_b32('v4', 2, 'v4')
    a.v_lshlrev_b32('v30', 4, 'v1')
    a.s_barrier()
    st.stamp('D')
    a.s_mov_b32('s50', 0)
    a.label('L_pollP')
    a.buffer_load_dword('v5', 'v4', 's[32:35]', 's44', mods='offen sc1')
    a.s_waitcnt('vmcnt(0)')
    a.v_cmp_ne_u32('vcc', 's43', 'v5')
    a.s_add_u32('s50', 's50', 1)
    a.s_cmp_gt_u32('s50', OPT['SPIN_MAX']); a.s_cbranch_scc1('L_pollP_done')
    a.s_cmp_lg_u64('vcc', 0); a.s_cbranch_scc1('L_pollP')
    a.label('L_pollP_done')
    st.stamp('polled')
    def reduce_load(stu, base):
        a.s_lshl_b32('s3', stu, 10); a.s_add_u32('s3', 's3', 's46')
        for kk in range(8):
            a.buffer_load_dwordx4(vr(base+4*kk, 4), 'v30', 's[32:35]', 's3', mods='offen sc1')
            if kk < 7: a.s_add_u32('s3', 's3', 40960)
    def reduce_sum(stu, base, first_wait, dst):
        for kk in range(8):
            a.s_waitcnt(f'vmcnt({first_wait-kk})')
            for i in range(4):
                src = vr(base+4*kk+i)
                if kk == 0:
                    a.v_lshlrev_b32(vr(8+2*i), 16, src); a.v_and_b32(vr(9+2*i), '0xffff0000', src)
                else:
                    a.v_lshlrev_b32('v16', 16, src); a.v_and_b32('v17', '0xffff0000', src)
                    a.v_add_f32(vr(8+2*i), vr(8+2*i), 'v16'); a.v_add_f32(vr(9+2*i), vr(9+2*i), 'v17')
        for i in range(4): a.v_cvt_pk_bf16_f32(vr(dst+i), vr(8+2*i), vr(9+2*i))
        a.s_lshl_b32('s3', stu, 5); a.s_add_u32('s3', 's3', 's47')
        a.buffer_store_dwordx4(vr(dst, 4), 'v2', 's[56:59]', 's3', mods='offen')
    a.s_cmp_eq_u32('s42', 0); a.s_cbranch_scc1('L_red2')
    reduce_load('s45', 64); reduce_sum('s45', 64, 7, 24)
    a.s_branch('L_red_done')
    a.label('L_red2')
    a.s_add_u32('s50', 's45', 4)
    reduce_load('s45', 64); reduce_load('s50', 96)
    reduce_sum('s45', 64, 15, 24)
    reduce_sum('s50', 96, 8, 20)
    a.label('L_red_done')
    if OPT['INSTR']:
        st.stamp('red'); a.s_waitcnt('vmcnt(0)'); st.stamp('end')
        a.s_cmp_eq_u32('s42', 0); a.s_cbranch_scc0('L_ld_end'); st.flush(0); a.label('L_ld_end')
    a.s_endpgm()

    a.label('L_compute')
    AF = 32; XF = 56; ACC = 64; SA = 32; KF = 160; QB = 208
    LN16 = 'v31'
    st = Stamps(a)
    vq = Q(a, 'vmcnt', 63)
    a.v_mov_b32('v30', hex(N_OFF))
    a.s_waitcnt('lgkmcnt(0)')
    srd(a, 32, 6, 7, WS_SIZE)
    a.s_or_b32('s50', 's2', 's39'); a.s_cmp_eq_u32('s50', 0); a.s_cbranch_scc0('L_no_nonce0')
    a.buffer_load_dword('v29', 'v30', 's[32:35]', 0, mods='offen sc1')
    a.label('L_no_nonce0')
    ring_setup(a, 's39', 208)
    srd(a, 20, 14, 15, 640*6144*2)
    srd(a, 16, 8, 9, 512*640*2)
    for s_ in range(1, OPT['CSTAGES']+1):
        for f in q_items(a, vq, 208, s_): f()
    srd(a, 24, 10, 11, 16*32*12288)
    srd(a, 60, 58, 59, 256)
    a.v_and_b32('v2', 31, 'v1'); a.v_mul_u32_u24('v2', 384, 'v2'); a.v_lshrrev_b32('v3', 5, 'v1'); a.v_lshl_add_u32('v2', 'v3', 4, 'v2')
    a.s_lshl_b32('s3', 's38', 2); a.s_add_u32('s3', 's3', 's39'); a.s_lshl_b32('s3', 's3', 5); a.s_add_u32('s3', 's3', 's37'); a.s_mul_i32('s3', 's3', 12288)
    for s12 in (10, 11):
        a.buffer_load_dwordx4(vr(KF+4*s12, 4), 'v2', 's[24:27]', 's3', mods=M('offen', offm(s12*32), OPT['NT_KV'])); vq.issue(('K',))
    a.s_cmp_eq_u32('s50', 0); a.s_cbranch_scc0('L_no_nonce')
    a.s_waitcnt(f"vmcnt({10*OPT['CSTAGES']+2})")
    a.v_add_u32('v29', hex(NONCE_C), 'v29')
    a.v_cmp_eq_u32('vcc', 0, 'v29')
    a.v_mov_b32('v4', hex(NONCE_C))
    a.v_cndmask_b32('v29', 'v29', 'v4', 'vcc')
    a.s_mov_b64('exec', 1)
    a.buffer_store_dword('v29', 'v30', 's[32:35]', 0, mods='offen sc1')
    a.v_mov_b32('v4', 0)
    a.buffer_store_dword('v29', 'v4', 's[60:63]', 0, mods='offen sc1')
    a.s_mov_b64('exec', -1)
    a.label('L_no_nonce')
    T = 32
    hf, G2, r_, d48, t1, t2_, t3, t4 = [vr(T+i) for i in range(8)]
    a.v_lshrrev_b32(hf, 5, 'v1'); a.v_bfe_u32(G2, 'v1', 4, 1); a.v_bfe_u32(r_, 'v1', 2, 2)
    a.v_and_b32(d48, 1, 'v1'); a.v_lshlrev_b32(d48, 1, d48); a.v_bfe_u32(t1, 'v1', 1, 1); a.v_or_b32(d48, d48, t1)
    a.v_lshl_add_u32(d48, G2, 2, d48); a.v_lshlrev_b32(d48, 3, d48)
    a.v_lshrrev_b32(t1, 1, r_); a.v_lshlrev_b32(t1, 6, t1); a.v_add_u32(t1, d48, t1)
    a.v_lshl_add_u32(t2_, hf, 3, r_)
    a.v_lshlrev_b32(t3, 7, t2_); a.v_add_u32('v2', t3, t1)
    a.v_xor_b32('v3', 64, 'v2')
    a.v_add_u32('v4', hex(2*SLOT), 'v2'); a.v_add_u32('v5', hex(2*SLOT), 'v3')
    a.v_mul_u32_u24('v14', 320, t2_); a.v_add_u32('v14', 'v14', d48)
    a.v_add_u32('v15', hex(2*SLOT), 'v14')
    a.v_and_b32(t3, 31, 'v1'); a.v_bfe_u32(t4, 'v1', 1, 3); a.v_xor_b32(t4, t4, hf); a.v_lshlrev_b32(t4, 4, t4)
    a.s_lshl_b32('s3', 's39', 12); a.s_add_u32('s3', 's3', 20480)
    a.v_lshl_add_u32(G2, t3, 7, t4); a.v_add_u32('v6', 's3', G2)
    for s in range(1, 4): a.v_xor_b32(vr(6+s), 32*s, 'v6')
    for s in range(4): a.v_add_u32(vr(10+s), hex(2*SLOT), vr(6+s))
    a.v_mul_u32_u24('v16', 320, t3); a.v_bfe_u32('v17', 'v1', 2, 2); a.v_xor_b32('v17', 'v17', hf); a.v_lshl_add_u32('v16', 'v17', 4, 'v16')
    a.s_mul_i32('s3', 's39', 10240); a.s_add_u32('s3', 's3', 3*SLOT); a.v_add_u32('v16', 's3', 'v16')
    a.v_xor_b32('v17', 32, 'v16')
    a.v_lshlrev_b32(LN16, 4, 'v1')
    a.s_lshl_b32('s3', 's36', 2); a.s_add_u32('s3', 's3', 's38')
    a.s_lshl_b32('s4', 's3', 3); a.s_add_u32('s4', 's4', 's40'); a.s_lshl_b32('s4', 's4', 4); a.s_add_u32('s4', 's4', 's39'); a.s_lshl_b32('s45', 's4', 12)
    a.s_add_u32('s45', 's45', hex(PX_OFF))
    a.s_lshl_b32('s3', 's3', 2); a.s_add_u32('s3', 's3', 's41')
    a.s_lshl_b32('s4', 's3', 3); a.s_add_u32('s4', 's4', 's40'); a.s_mul_i32('s4', 's4', 40960); a.s_mul_i32('s5', 's39', 10240); a.s_add_u32('s4', 's4', 's5'); a.s_add_u32('s52', 's4', hex(P_OFF))
    a.s_lshl_b32('s4', 's3', 2); a.s_add_u32('s4', 's4', 's39'); a.s_lshl_b32('s4', 's4', 7); a.s_lshl_b32('s5', 's40', 2); a.s_add_u32('s4', 's4', 's5'); a.s_add_u32('s43', 's4', hex(FP_OFF))

    q = Q(a, 'lgkmcnt', 15)
    def rdA(t, n):
        st_, s = divmod(n, 4); slot = st_ % 4
        base = (2 if slot < 2 else 4) + (t % 2)
        off = (slot % 2) * SLOT + (t//2)*8192 + s*2048
        for e in range(2):
            a.ds_read_b64_tr_b16(vr(AF+4*t+2*e, 2), vr(base), mods=offm(off+e*512))
            q.issue(('A', t, n))
    def rdX(n):
        st_, s = divmod(n, 4); slot = st_ % 4
        base = (6 if slot < 2 else 10) + s
        a.ds_read_b128(vr(XF+4*(n % 2), 4), vr(base), mods=offm((slot % 2)*SLOT + (4096 if st_ < 10 else 0)))
        q.issue(('X', n))
    def mf(t, n):
        q.wait([('A', t, n), ('X', n)])
        a.v_mfma_f32_32x32x16_bf16(vr(ACC+16*t, 16), vr(AF+4*t, 4), vr(XF+4*(n % 2), 4), '0' if n == 0 else vr(ACC+16*t, 16))
    def cvtQ(t):
        for i in range(8): a.v_cvt_pk_bf16_f32(vr(QB+8*t+i), vr(ACC+16*t+2*i), vr(ACC+16*t+2*i+1))
    st.stamp('pre')
    a.s_barrier()
    st.stamp('B0')
    rdX(0)
    for t in range(6): rdA(t, 0)
    def rdK(s12):
        a.ds_read_b128(vr(KF+4*s12, 4), vr(16 + (s12 & 1)), mods=offm((s12 >> 1)*64)); q.issue(('K', s12))
    for n in range(40):
        s = n % 4
        if s < 3:
            rdX(n+1)
            for t in range(6):
                mf(t, n); rdA(t, n+1)
                if n < 2 and t < 5: rdK(5*n + t)
        else:
            for t in range(3): mf(t, n)
            q.waitall()
            vq.wait([('S', n//4 + 1)])
            if n == 23:
                a.v_mov_b32('v28', 0)
                a.buffer_load_dword('v29', 'v28', 's[60:63]', 0, mods='offen sc1'); vq.issue(('N',))
            a.s_barrier()
            if n < 39:
                rdX(n+1); rdA(0, n+1); rdA(1, n+1)
                mf(3, n); rdA(2, n+1); mf(4, n); rdA(3, n+1); mf(5, n); rdA(4, n+1); rdA(5, n+1)
            else:
                mf(3, n); cvtQ(0); mf(4, n); cvtQ(1); mf(5, n); cvtQ(2)
    st.stamp('qdone')
    vq.wait([('K',)])
    def mS(s12):
        a.v_mfma_f32_32x32x16_bf16(vr(SA, 16), vr(KF+4*s12, 4), vr(QB+4*s12, 4), '0' if s12 == 0 else vr(SA, 16))
    mS(0); mS(1); cvtQ(3); mS(2); mS(3); cvtQ(4); mS(4); mS(5); cvtQ(5)
    for s12 in range(6, 12): mS(s12)
    OA = 64; VW = 160; AF2 = 176 - 176 + 0
    AF2 = 208 + 32
    S = lambda j: vr(SA+j)
    m0_, m1_ = 'v48', 'v49'
    a.v_max3_f32(m0_, S(0), S(1), S(2))
    for j in range(3, 15, 2): a.v_max3_f32(m0_, m0_, S(j), S(j+1))
    a.v_max_f32(m0_, m0_, S(15))
    a.v_mov_b32(m1_, m0_)
    a.v_permlane32_swap_b32(m0_, m1_)
    a.v_max_f32(m0_, m0_, m1_)
    c = 192 ** -0.5 * 1.4426950408889634
    cbits = struct.unpack('<I', struct.pack('<f', c))[0]
    a.s_mov_b32('s46', hex(cbits))
    a.v_mul_f32(m0_, 's46', m0_)
    for j in range(16): a.v_fma_f32(S(j), S(j), 's46', '-' + m0_)
    for j in range(16): a.v_exp_f32(S(j), S(j))
    a.v_add_f32('v50', S(0), S(1)); a.v_add_f32('v51', S(2), S(3))
    for j in range(4, 16, 2):
        a.v_add_f32('v50', 'v50', S(j)); a.v_add_f32('v51', 'v51', S(j+1))
    a.v_add_f32('v50', 'v50', 'v51')
    a.v_mov_b32('v51', 'v50')
    a.v_permlane32_swap_b32('v50', 'v51')
    a.v_add_f32('v50', 'v50', 'v51')
    a.v_rcp_f32('v50', 'v50')
    for j in range(16): a.v_mul_f32(S(j), S(j), 'v50')
    PR = {0: 240, 1: 248, 2: 144, 3: 152}
    for i in range(8): a.v_cvt_pk_bf16_f32(vr(PR[0]+i), S(2*i), S(2*i+1))
    st.stamp('smax')
    TG = 32
    def publish():
        vq.wait([('N',)])
        a.v_readfirstlane_b32('s47', 'v29')
        a.s_cmp_lg_u32('s47', 0); a.s_cbranch_scc1('L_have_nonce')
        get_nonce(a, 'v29', 's47', 'cp')
        a.label('L_have_nonce')
        vq.q = []
        for s_ in range(3):
            a.v_mov_b32(vr(TG+4*s_), vr(PR[0]+2*s_)); a.v_mov_b32(vr(TG+4*s_+1), 's47')
            a.v_mov_b32(vr(TG+4*s_+2), vr(PR[0]+2*s_+1)); a.v_mov_b32(vr(TG+4*s_+3), 's47')
        a.v_mov_b32('v24', vr(PR[0]+6)); a.v_mov_b32('v25', 's47'); a.v_mov_b32('v26', vr(PR[0]+7)); a.v_mov_b32('v27', 's47')
        a.s_lshl_b32('s3', 's41', 14); a.s_add_u32('s3', 's3', 's45')
        for s_ in range(4):
            a.buffer_store_dwordx4(vr([32, 36, 40, 24][s_], 4), LN16, 's[32:35]', 's3', mods=M('offen', offm(s_*1024), 'sc1')); vq.issue(('PS',))
        st.stamp('pstored')
    AF2 = 44
    VF2 = 16
    TL = 24
    RT = 32
    RTG = [32, 36, 40, 24]
    NK = 48
    def rdW(t, n2):
        s_, k = divmod(n2, 4); st_ = 10 + s_; slot = st_ % 4
        base = 14 if slot < 2 else 15
        off = (slot % 2)*SLOT + k*5120 + t*64
        for e in range(2):
            a.ds_read_b64_tr_b16(vr(AF2+4*t+2*e, 2), vr(base), mods=offm(off+e*1280))
            q.issue(('W', t, n2))
    def rdV(n2):
        s_, k = divmod(n2, 4); st_ = 10 + s_; slot = st_ % 4
        base = (6 if slot < 2 else 10) + k
        a.ds_read_b128(vr(VF2+4*(n2 % 2), 4), vr(base), mods=offm((slot % 2)*SLOT))
        q.issue(('V', n2))
    def mw(t, n2):
        q.wait([('W', t, n2), ('V', n2)])
        a.v_mfma_f32_32x32x16_bf16(vr(VW+16*t, 16), vr(VF2+4*(n2 % 2), 4), vr(AF2+4*t, 4), '0' if n2 % 12 == 0 else vr(VW+16*t, 16))
    def ldP(hr):
        a.s_add_u32('s3', 's41', hr); a.s_and_b32('s3', 's3', 3); a.s_lshl_b32('s3', 's3', 14); a.s_add_u32('s53', 's3', 's45')
        for s_ in range(4):
            a.buffer_load_dwordx4(vr(RTG[s_], 4), LN16, 's[32:35]', 's53', mods=M('offen', offm(s_*1024), 'sc1')); vq.issue(('PL', hr))
    def chkP(hr):
        L = f'L_chkP{hr}'
        a.s_mov_b32('s50', 0)
        a.s_waitcnt('vmcnt(0)'); vq.q = []
        a.s_branch(L + '_c')
        a.label(L)
        for s_ in range(4):
            a.buffer_load_dwordx4(vr(RTG[s_], 4), LN16, 's[32:35]', 's53', mods=M('offen', offm(s_*1024), 'sc1'))
        a.s_waitcnt('vmcnt(0)')
        a.label(L + '_c')
        a.v_xor_b32('v28', 's47', vr(RTG[0]+1))
        for s_ in range(4):
            for o in (1, 3):
                if s_ == 0 and o == 1: continue
                a.v_xor_b32('v29', 's47', vr(RTG[s_]+o)); a.v_or_b32('v28', 'v28', 'v29')
        a.v_cmp_ne_u32('vcc', 0, 'v28')
        a.s_add_u32('s50', 's50', 1)
        a.s_cmp_gt_u32('s50', OPT['SPIN_MAX']); a.s_cbranch_scc1(L + '_d')
        a.s_cmp_lg_u64('vcc', 0); a.s_cbranch_scc1(L)
        a.label(L + '_d')
        for s_ in range(4):
            a.v_mov_b32(vr(PR[hr]+2*s_), vr(RTG[s_])); a.v_mov_b32(vr(PR[hr]+2*s_+1), vr(RTG[s_]+2))
    def cvt_store(dst, acc, sbase, f0):
        for i in range(8): a.v_cvt_pk_bf16_f32(vr(dst+i), vr(acc+2*i), vr(acc+2*i+1))
        for u in range(2):
            f = f0+u
            so = sbase; off = f*1024
            if off >= 4096:
                a.s_add_u32('s46', sbase, hex(off & ~4095)); so = 's46'; off &= 4095
            a.buffer_store_dwordx4(vr(dst+4*u, 4), LN16, 's[32:35]', so, mods=M('offen', offm(off), 'sc1'))
            vq.issue(('ST',))
    rdV(0)
    for t in range(5): rdW(t, 0)
    cnt = 0
    for n2 in range(NK):
        hr, k12 = divmod(n2, 12)
        s = n2 % 4
        last = (n2 == NK-1)
        if s < 3:
            rdV(n2+1)
            for t in range(5):
                mw(t, n2); rdW(t, n2+1); cnt += 1
        else:
            for t in range(2): mw(t, n2); cnt += 1
            if not last:
                q.waitall(); a.s_barrier()
                if (n2//4) in (1, 4, 7): st.stamp(f'W{n2//4+1}')
                rdV(n2+1); rdW(0, n2+1); rdW(1, n2+1)
                mw(2, n2); rdW(2, n2+1); mw(3, n2); rdW(3, n2+1); mw(4, n2); rdW(4, n2+1)
            else:
                mw(2, n2); mw(3, n2); mw(4, n2)
            cnt += 3
        if n2 == OPT['PUB_K']: publish()
        if k12 == OPT['PL_K'] and hr >= 1: ldP(hr)
        if k12 == OPT['PC_K'] and hr >= 1: chkP(hr)
        if k12 == 11:
            for t in range(5):
                for i in range(8): a.v_cvt_pk_bf16_f32(vr(VW+16*t+i), vr(VW+16*t+2*i), vr(VW+16*t+2*i+1))
                for u in range(2):
                    a.v_mfma_f32_32x32x16_bf16(vr(OA+16*t, 16), vr(VW+16*t+4*u, 4), vr(PR[hr]+4*u, 4), '0' if (hr == 0 and u == 0) else vr(OA+16*t, 16))
                if hr == 3 and t >= 1: cvt_store(VW+16*(t-1)+8, OA+16*(t-1), 's52', 2*(t-1))
    cvt_store(VW+16*4+8, OA+64, 's52', 8)
    st.stamp('mdone')
    a.s_barrier()
    a.s_waitcnt('vmcnt(0)'); vq.q = []
    a.s_mov_b64('exec', 1)
    a.v_mov_b32('v5', 's47'); a.v_mov_b32('v6', 0)
    a.buffer_store_dword('v5', 'v6', 's[32:35]', 's43', mods='offen sc1')
    a.s_mov_b64('exec', -1)
    if OPT['INSTR']:
        st.stamp('flag')
        a.s_cmp_eq_u32('s39', 0); a.s_cbranch_scc0('L_c_end'); st.flush(1); a.label('L_c_end')
    a.s_endpgm()
    a.label('L_end')
    a.s_endpgm()

def build(path):
    hdr = open('cdna_kernels/%s.s.ref' % NAME).read().split('\n')
    head = [l for l in hdr if l.startswith(';') and '@launch' not in l and 'Override' not in l and 'grid=ceil' not in l]
    out = '\n'.join(head) + '\n'
    out += '; @launch grid=(256,1,1) block=(512,1,1) lds=163840\n'
    out += '.amdgcn_target "amdgcn-amd-amdhsa--gfx950"\n.text\n'
    a = Asm(); gen(a); out += a.finalize()
    out += f""".section .rodata,"a"
.p2align 6
.amdhsa_kernel {KN}
  .amdhsa_next_free_vgpr 256
  .amdhsa_next_free_sgpr 102
  .amdhsa_accum_offset 256
  .amdhsa_group_segment_fixed_size 0
  .amdhsa_kernarg_size 104
  .amdhsa_user_sgpr_count 2
  .amdhsa_user_sgpr_kernarg_segment_ptr 1
  .amdhsa_system_sgpr_workgroup_id_x 1
.end_amdhsa_kernel
"""
    open(path, 'w').write(out)

if __name__ == '__main__':
    path = sys.argv[1]
    for arg in sys.argv[2:]:
        k, v = arg.split('=')
        OPT[k] = int(v) if isinstance(OPT[k], int) else v
    build(path)
```

```python
import sys, struct
from asmlib import Asm, vr, sr

NAME = "concat_heads__gqa_block_cached__mha_block_cached__near_ridge"
KN = NAME + "_kernel"
OPT = dict(NT_KV='', NT_W='', NT_X='', NT_WO='', INSTR=0, SPIN_MAX=200000, CSTAGES=2, PL_K=1, PC_K=9, ROTQ=0, ROTW=0, PUB_K=10, KLATE=1, LOOK=3, SMK=2)
PX_OFF = 0
P_OFF = 16 << 20
P_BYTES = 256*40960
FP_OFF = 28 << 20
N_OFF = FP_OFF + 128*128
WS_SIZE = N_OFF + 128
SLOT = 40960
T_OFF = 64 << 20
NONCE_C = 0x9E3779B9
NST = 22

class Q:
    def __init__(self, a, name, mx): self.a = a; self.q = []; self.name = name; self.mx = mx
    def issue(self, tag): self.q.append(tag)
    def has(self, tag): return tag in self.q
    def wait(self, tags):
        idx = -1
        for i, t in enumerate(self.q):
            if t in tags: idx = i
        if idx < 0: return
        n = min(len(self.q) - 1 - idx, self.mx)
        self.a.s_waitcnt(f'{self.name}({n})')
        self.q = self.q[len(self.q) - n:] if n else []
    def waitall(self):
        self.a.s_waitcnt(f'{self.name}(0)'); self.q = []

class Stamps:
    def __init__(self, a, base_sgpr=64): self.a = a; self.n = 0; self.base = base_sgpr; self.names = []
    def stamp(self, name=''):
        if not OPT['INSTR']: return
        if OPT['INSTR'] == 3 and name not in ('start', 'd', 'k', 'k2', 'q0', 'end', 'pre', 'B0', 'flag'): return
        assert self.n < 16, self.names
        self.a.s_memrealtime(sr(self.base+2*self.n, 2)); self.n += 1; self.names.append(name)
    def flush(self, slot):
        if not OPT['INSTR']: return
        a = self.a
        print(f'stamps slot {slot}:', ' '.join(self.names), file=sys.stderr)
        a.s_waitcnt('lgkmcnt(0)')
        a.s_mov_b32('s96', 's6'); a.s_and_b32('s97', 's7', '0xffff'); a.s_mov_b32('s98', hex(T_OFF + (4 << 20))); a.s_mov_b32('s99', '0x20000')
        a.s_lshl_b32('s3', 's2', 9); a.s_add_u32('s3', 's3', hex(T_OFF + slot*128))
        a.v_mov_b32('v2', 0)
        a.s_mov_b64('exec', 1)
        for i in range(self.n):
            a.v_mov_b32('v3', sr(self.base+2*i))
            a.buffer_store_dword('v3', 'v2', 's[96:99]', 's3', mods=f'offen offset:{4*i}')
        a.s_mov_b64('exec', -1)

def srd(a, d, lo, hi, size):
    a.s_mov_b32(sr(d), sr(lo)); a.s_and_b32(sr(d+1), sr(hi), '0xffff'); a.s_mov_b32(sr(d+2), hex(size)); a.s_mov_b32(sr(d+3), '0x20000')
def M(*parts): return ' '.join(p for p in parts if p)
def offm(off): return f'offset:{off}' if off else ''

def get_nonce(a, vtmp, sdst, tag):
    L = f'nonce_{tag}'
    a.s_mov_b32('s51', 0)
    a.label(L)
    a.v_mov_b32(vtmp, 0)
    a.buffer_load_dword(vtmp, vtmp, 's[60:63]', 0, mods='offen sc1')
    a.s_waitcnt('vmcnt(0)')
    a.v_readfirstlane_b32(sdst, vtmp)
    a.s_add_u32('s51', 's51', 1)
    a.s_cmp_gt_u32('s51', OPT['SPIN_MAX']); a.s_cbranch_scc1(L + '_done')
    a.s_cmp_eq_u32(sdst, 0); a.s_cbranch_scc1(L)
    a.label(L + '_done')

def ring_setup(a, lw, vb, sa='s44', sb='s45'):
    a.v_lshrrev_b32('v2', 3, 'v1')
    a.v_and_b32('v3', 7, 'v1')
    a.v_lshrrev_b32('v4', 1, 'v2'); a.v_and_b32('v5', 1, 'v4'); a.v_lshlrev_b32('v5', 2, 'v5'); a.v_xor_b32('v5', 'v3', 'v5')
    a.v_lshlrev_b32('v5', 4, 'v5')
    a.s_mul_i32('s3', 's37', 384)
    a.s_mul_i32('s4', lw, 16*12288)
    a.s_add_u32('s3', 's3', 's4')
    a.s_mov_b32('s5', 12288)
    a.v_mul_lo_u32('v6', 'v2', 's5')
    a.v_add_u32('v6', 'v6', 'v5')
    a.v_add_u32(vr(vb), 's3', 'v6')
    a.v_add_u32(vr(vb+1), hex(8*12288), vr(vb))
    a.s_lshl_b32('s3', 's38', 7); a.s_lshl_b32('s4', lw, 5); a.s_add_u32('s3', 's3', 's4'); a.s_mul_i32('s3', 's3', 1280)
    a.s_mov_b32('s5', 1280)
    a.v_mul_lo_u32('v6', 'v2', 's5'); a.v_add_u32('v6', 's3', 'v6')
    a.v_xor_b32('v5', 'v3', 'v4'); a.v_lshlrev_b32('v7', 4, 'v5')
    a.v_xor_b32('v5', 4, 'v5'); a.v_lshlrev_b32('v5', 4, 'v5')
    for i in range(4):
        a.v_add_u32(vr(vb+4+i), 'v6', 'v7' if i % 2 == 0 else 'v5')
        if i: a.v_add_u32(vr(vb+4+i), hex(i*8*1280), vr(vb+4+i))
    a.s_lshl_b32(sa, lw, 11)
    a.s_lshl_b32(sb, lw, 12)

def q_items(a, vq, vb, s, sa='s44', sb='s45'):
    slot = (s % 4) * SLOT
    items = []
    for rg in range(2):
        for t2 in range(3):
            def f(rg=rg, t2=t2, first=(rg == 0 and t2 == 0)):
                if first:
                    if OPT['ROTQ']:
                        a.s_mul_i32('s3', 's38', 5); a.s_lshr_b32('s3', 's3', 1); a.s_add_u32('s3', 's3', s)
                        a.s_cmp_ge_u32('s3', 10); a.s_cselect_b32('s4', 10, 0); a.s_sub_u32('s3', 's3', 's4')
                        a.s_mul_i32('s46', 's3', 64*12288); a.s_lshl_b32('s47', 's3', 7)
                    else:
                        a.s_mov_b32('s46', hex(s*64*12288)); a.s_mov_b32('s47', s*128)
                a.s_add_u32('m0', sa, hex(slot + t2*8192 + rg*1024 - t2*128))
                a.buffer_load_dwordx4(vr(vb+rg), 's[20:23]', 's46', mods=M('offen', offm(t2*128), OPT['NT_W'], 'lds')); vq.issue(('S', s))
            items.append(f)
    for i in range(4):
        def f(i=i):
            a.s_add_u32('m0', sb, hex(slot + 24576 + i*1024))
            a.buffer_load_dwordx4(vr(vb+4+i), 's[16:19]', 's47', mods=M('offen', OPT['NT_X'], 'lds')); vq.issue(('S', s))
        items.append(f)
    return items

def gen(a):
    a.raw('.p2align 8'); a.raw(f'.globl {KN}'); a.raw(f'.type {KN},@function'); a.label(KN)
    a.s_cmp_ge_u32('s2', 256); a.s_cbranch_scc1('L_end')
    a.s_and_b32('s3', 's2', 7)
    a.s_lshr_b32('s36', 's3', 2)
    a.s_mul_i32('s4', 's36', 40)
    a.s_load_dwordx8('s[8:15]', 's[0:1]', 's4')
    a.s_add_u32('s4', 's4', 32)
    a.s_load_dwordx2('s[48:49]', 's[0:1]', 's4')
    a.s_load_dwordx4('s[56:59]', 's[0:1]', 80)
    a.s_load_dwordx2('s[6:7]', 's[0:1]', 96)
    a.s_and_b32('s3', 's3', 3)
    a.s_lshl_b32('s3', 's3', 3)
    a.s_lshr_b32('s4', 's2', 3)
    a.s_and_b32('s5', 's4', 7)
    a.s_or_b32('s37', 's3', 's5')
    a.s_lshr_b32('s38', 's4', 3)
    a.v_lshrrev_b32('v1', 6, 'v0')
    a.v_readfirstlane_b32('s39', 'v1')
    a.v_and_b32('v1', 63, 'v0')
    a.s_lshr_b32('s40', 's37', 2)
    a.s_and_b32('s41', 's37', 3)
    a.s_cmp_lt_u32('s39', 4); a.s_cbranch_scc1('L_compute')

    a.s_sub_u32('s42', 's39', 4)
    st = Stamps(a); st.stamp('start')
    ring_setup(a, 's42', 8)
    if OPT['INSTR'] == 3:
        a.s_waitcnt('lgkmcnt(0)'); st.stamp('k'); a.s_waitcnt('lgkmcnt(0)'); st.stamp('k2'); a.s_waitcnt('lgkmcnt(0)')
    if OPT['INSTR'] == 2: st.stamp('setup')
    a.s_waitcnt('lgkmcnt(0)')
    if OPT['INSTR'] == 2: st.stamp('karg')
    srd(a, 20, 14, 15, 640*6144*2)
    srd(a, 16, 8, 9, 512*640*2)
    vq = Q(a, 'vmcnt', 63)
    for f in q_items(a, vq, 8, 0):
        f()
        if OPT['INSTR'] == 3: st.stamp('d')
    if OPT['INSTR'] == 2: st.stamp('st0')
    srd(a, 24, 10, 11, 16*32*12288)
    a.s_mov_b32('s5', 3277)
    a.s_lshl_b32('s3', 's38', 2); a.s_add_u32('s3', 's3', 's42'); a.s_lshl_b32('s3', 's3', 5); a.s_add_u32('s3', 's3', 's37'); a.s_mul_i32('s3', 's3', 12288)
    for b in range(5):
        a.v_add_u32('v2', 64*b, 'v1')
        a.v_mul_lo_u32('v3', 'v2', 's5'); a.v_lshrrev_b32('v3', 16, 'v3')
        a.v_mul_u32_u24('v4', 20, 'v3'); a.v_sub_u32('v4', 'v2', 'v4')
        a.v_bfe_u32('v5', 'v3', 2, 2); a.v_xor_b32('v4', 'v4', 'v5')
        a.v_mul_u32_u24('v3', 384, 'v3'); a.v_lshl_add_u32('v3', 'v4', 4, 'v3')
        a.v_add_u32(vr(32+b), 's3', 'v3')
    a.s_mul_i32('s50', 's42', 10240)
    a.s_mov_b32('s46', 16*384)
    for aa in range(2):
        for b in range(5):
            a.s_add_u32('m0', 's50', hex(3*SLOT + aa*5120 + b*1024))
            a.buffer_load_dwordx4(vr(32+b), 's[24:27]', 's46' if aa else 0, mods=M('offen', OPT['NT_KV'], 'lds')); vq.issue(('S', 1 if OPT['KLATE'] else 0))
    if OPT['INSTR'] == 2: st.stamp('kst')
    srd(a, 28, 12, 13, 16*32*12288)
    srd(a, 52, 48, 49, 6144*640*2)
    srd(a, 32, 6, 7, WS_SIZE)
    srd(a, 60, 58, 59, 256)
    srd(a, 56, 56, 57, 16*32*1280*2)
    WV = 16
    a.s_mov_b32('s5', 3277)
    a.s_mul_i32('s3', 's40', 768*1280); a.s_mul_i32('s4', 's41', 320); a.s_add_u32('s3', 's3', 's4')
    a.s_mul_i32('s4', 's42', 16*1280); a.s_add_u32('s3', 's3', 's4')
    a.s_mov_b32('s4', 1280)
    for b in range(5):
        a.v_add_u32('v2', 64*b, 'v1')
        a.v_mul_lo_u32('v3', 'v2', 's5'); a.v_lshrrev_b32('v3', 16, 'v3')
        a.v_mul_u32_u24('v4', 20, 'v3'); a.v_sub_u32('v4', 'v2', 'v4')
        a.v_mul_lo_u32('v3', 'v3', 's4'); a.v_lshl_add_u32('v3', 'v4', 4, 'v3')
        a.v_add_u32(vr(WV+b), 's3', 'v3')
    VV = 21
    a.v_lshrrev_b32('v2', 3, 'v1'); a.v_and_b32('v3', 7, 'v1'); a.v_lshrrev_b32('v4', 1, 'v2')
    a.v_xor_b32('v5', 'v3', 'v4'); a.v_lshlrev_b32('v7', 4, 'v5'); a.v_xor_b32('v5', 4, 'v5'); a.v_lshlrev_b32('v5', 4, 'v5')
    a.v_mul_u32_u24('v6', 384, 'v2')
    a.s_lshl_b32('s3', 's38', 2); a.s_add_u32('s3', 's3', 's42'); a.s_lshl_b32('s3', 's3', 5); a.s_lshl_b32('s4', 's40', 2); a.s_add_u32('s3', 's3', 's4'); a.s_mul_i32('s3', 's3', 12288)
    a.v_add_u32('v6', 's3', 'v6')
    for i in range(4):
        a.v_add_u32(vr(VV+i), 'v6', 'v7' if i % 2 == 0 else 'v5')
        if i: a.v_add_u32(vr(VV+i), hex(i*8*384), vr(VV+i))
    a.s_mul_i32('s50', 's42', 5120)
    def w_items(s):
        sg = s - 10; hr, sub = divmod(sg, 3)
        slot = (s % 4) * SLOT
        items = []
        for b in range(5):
            def f(b=b):
                if b == 0:
                    a.s_add_u32('s3', 's41', hr); a.s_and_b32('s3', 's3', 3)
                    a.s_mul_i32('s46', 's3', 192*1280); a.s_mul_i32('s47', 's3', 12288)
                    if OPT['ROTW']:
                        a.s_add_u32('s3', 's38', sub)
                        a.s_cmp_ge_u32('s3', 3); a.s_cselect_b32('s4', 3, 0); a.s_sub_u32('s3', 's3', 's4')
                        a.s_cmp_ge_u32('s3', 3); a.s_cselect_b32('s4', 3, 0); a.s_sub_u32('s3', 's3', 's4')
                        a.s_mul_i32('s4', 's3', 64*1280); a.s_add_u32('s46', 's46', 's4')
                        a.s_lshl_b32('s4', 's3', 7); a.s_add_u32('s47', 's47', 's4')
                    else:
                        a.s_add_u32('s46', 's46', hex(64*sub*1280)); a.s_add_u32('s47', 's47', sub*128)
                a.s_add_u32('m0', 's50', hex(slot + b*1024))
                a.buffer_load_dwordx4(vr(WV+b), 's[52:55]', 's46', mods=M('offen', OPT['NT_WO'], 'lds')); vq.issue(('S', s))
            items.append(f)
        for i in range(4):
            def f(i=i):
                a.s_add_u32('m0', 's45', hex(slot + 20480 + i*1024))
                a.buffer_load_dwordx4(vr(VV+i), 's[28:31]', 's47', mods=M('offen', OPT['NT_KV'], 'lds')); vq.issue(('S', s))
            items.append(f)
        return items
    def stage_items(s): return q_items(a, vq, 8, s) if s < 10 else w_items(s)
    CS = OPT['CSTAGES']
    st.stamp('pre')
    vq.wait([('S', 0)]); st.stamp('q0'); a.s_barrier()
    nxt = CS + 1
    for i in range(0, NST-1):
        if i in ((2, 4, 6, 8, 10, 12, 15, 18) if OPT['INSTR'] == 1 else (1, 2, 3, 4)): st.stamp(f'B{i}')
        if OPT['KLATE'] and i == 1:
            while nxt <= 2:
                for f in stage_items(nxt): f()
                nxt += 1
            a.s_barrier()
        while nxt <= min(NST-1, i+OPT['LOOK']) and not (i == 0 and nxt == 3):
            for f in stage_items(nxt): f()
            nxt += 1
        vq.wait([('S', i+1)])
        a.s_barrier()
    get_nonce(a, 'v2', 's43', 'ld')
    a.s_lshl_b32('s3', 's36', 2); a.s_add_u32('s3', 's3', 's38'); a.s_lshl_b32('s3', 's3', 2); a.s_add_u32('s3', 's3', 's41')
    a.s_lshr_b32('s4', 's40', 1)
    a.s_lshl_b32('s5', 's3', 2); a.s_add_u32('s5', 's5', 's4'); a.s_lshl_b32('s5', 's5', 7); a.s_add_u32('s44', 's5', hex(FP_OFF))
    a.s_and_b32('s5', 's40', 1); a.s_mul_i32('s5', 's5', 5)
    a.s_add_u32('s45', 's5', 's42')
    a.s_mul_i32('s46', 's3', 8*40960); a.s_mul_i32('s47', 's4', 10240); a.s_add_u32('s46', 's46', 's47'); a.s_add_u32('s46', 's46', hex(P_OFF))
    a.s_lshl_b32('s47', 's38', 2); a.s_add_u32('s47', 's47', 's4'); a.s_mul_i32('s47', 's47', 32*2560)
    a.s_mul_i32('s3', 's36', 1280); a.s_add_u32('s47', 's47', 's3'); a.s_mul_i32('s3', 's41', 320); a.s_add_u32('s47', 's47', 's3')
    a.v_and_b32('v2', 31, 'v1'); a.v_mul_u32_u24('v2', 2560, 'v2'); a.v_lshrrev_b32('v3', 5, 'v1'); a.v_lshl_add_u32('v2', 'v3', 4, 'v2')
    a.v_and_b32('v4', 7, 'v1'); a.v_lshlrev_b32('v4', 2, 'v4')
    a.v_lshlrev_b32('v30', 4, 'v1')
    a.s_barrier()
    st.stamp('D')
    a.s_mov_b32('s50', 0)
    a.label('L_pollP')
    a.buffer_load_dword('v5', 'v4', 's[32:35]', 's44', mods='offen sc1')
    a.s_waitcnt('vmcnt(0)')
    a.v_cmp_ne_u32('vcc', 's43', 'v5')
    a.s_add_u32('s50', 's50', 1)
    a.s_cmp_gt_u32('s50', OPT['SPIN_MAX']); a.s_cbranch_scc1('L_pollP_done')
    a.s_cmp_lg_u64('vcc', 0); a.s_cbranch_scc1('L_pollP')
    a.label('L_pollP_done')
    st.stamp('polled')
    def reduce_load(stu, base):
        a.s_lshl_b32('s3', stu, 10); a.s_add_u32('s3', 's3', 's46')
        for kk in range(8):
            a.buffer_load_dwordx4(vr(base+4*kk, 4), 'v30', 's[32:35]', 's3', mods='offen sc1')
            if kk < 7: a.s_add_u32('s3', 's3', 40960)
    def reduce_sum(stu, base, first_wait, dst):
        for kk in range(8):
            a.s_waitcnt(f'vmcnt({first_wait-kk})')
            for i in range(4):
                src = vr(base+4*kk+i)
                if kk == 0:
                    a.v_lshlrev_b32(vr(8+2*i), 16, src); a.v_and_b32(vr(9+2*i), '0xffff0000', src)
                else:
                    a.v_lshlrev_b32('v16', 16, src); a.v_and_b32('v17', '0xffff0000', src)
                    a.v_add_f32(vr(8+2*i), vr(8+2*i), 'v16'); a.v_add_f32(vr(9+2*i), vr(9+2*i), 'v17')
        for i in range(4): a.v_cvt_pk_bf16_f32(vr(dst+i), vr(8+2*i), vr(9+2*i))
        a.s_lshl_b32('s3', stu, 5); a.s_add_u32('s3', 's3', 's47')
        a.buffer_store_dwordx4(vr(dst, 4), 'v2', 's[56:59]', 's3', mods='offen')
    a.s_cmp_eq_u32('s42', 0); a.s_cbranch_scc1('L_red2')
    reduce_load('s45', 64); reduce_sum('s45', 64, 7, 24)
    a.s_branch('L_red_done')
    a.label('L_red2')
    a.s_add_u32('s50', 's45', 4)
    reduce_load('s45', 64); reduce_load('s50', 96)
    reduce_sum('s45', 64, 15, 24)
    reduce_sum('s50', 96, 8, 20)
    a.label('L_red_done')
    if OPT['INSTR']:
        st.stamp('red'); a.s_waitcnt('vmcnt(0)'); st.stamp('end')
        a.s_cmp_eq_u32('s42', 0); a.s_cbranch_scc0('L_ld_end'); st.flush(0); a.label('L_ld_end')
    a.s_endpgm()

    a.label('L_compute')
    AF = 32; XF = 56; ACC = 64; SA = 240; KF = 160; QB = 64
    LN16 = 'v31'
    st = Stamps(a)
    vq = Q(a, 'vmcnt', 63)
    a.v_mov_b32('v30', hex(N_OFF))
    a.s_waitcnt('lgkmcnt(0)')
    srd(a, 32, 6, 7, WS_SIZE)
    def early_setup():
        ring_setup(a, 's39', 208, 's54', 's55')
        srd(a, 20, 14, 15, 640*6144*2)
        srd(a, 16, 8, 9, 512*640*2)
        srd(a, 24, 10, 11, 16*32*12288)
        a.v_and_b32('v216', 31, 'v1'); a.v_mul_u32_u24('v216', 384, 'v216'); a.v_lshrrev_b32('v3', 5, 'v1'); a.v_lshl_add_u32('v216', 'v3', 4, 'v216')
        a.s_lshl_b32('s3', 's38', 2); a.s_add_u32('s3', 's3', 's39'); a.s_lshl_b32('s3', 's3', 5); a.s_add_u32('s3', 's3', 's37'); a.s_mul_i32('s56', 's3', 12288)
    def early_issue():
        for s_ in range(1, OPT['CSTAGES']+1):
            for f in q_items(a, vq, 208, s_, 's54', 's55'): f()
        for s12 in (10, 11):
            a.buffer_load_dwordx4(vr(KF+4*s12, 4), 'v216', 's[24:27]', 's56', mods=M('offen', offm(s12*32), OPT['NT_KV'])); vq.issue(('K',))
    srd(a, 60, 58, 59, 256)
    a.s_or_b32('s50', 's2', 's39'); a.s_cmp_eq_u32('s50', 0); a.s_cbranch_scc0('L_no_nonce0')
    a.buffer_load_dword('v29', 'v30', 's[32:35]', 0, mods='offen sc1')
    a.label('L_no_nonce0')
    early_setup()
    if not OPT['KLATE']: early_issue()
    a.s_cmp_eq_u32('s50', 0); a.s_cbranch_scc0('L_no_nonce')
    a.s_waitcnt('vmcnt(0)' if OPT['KLATE'] else f"vmcnt({10*OPT['CSTAGES']+2})")
    a.v_add_u32('v29', hex(NONCE_C), 'v29')
    a.v_cmp_eq_u32('vcc', 0, 'v29')
    a.v_mov_b32('v4', hex(NONCE_C))
    a.v_cndmask_b32('v29', 'v29', 'v4', 'vcc')
    a.s_mov_b64('exec', 1)
    a.buffer_store_dword('v29', 'v30', 's[32:35]', 0, mods='offen sc1')
    a.v_mov_b32('v4', 0)
    a.buffer_store_dword('v29', 'v4', 's[60:63]', 0, mods='offen sc1')
    a.s_mov_b64('exec', -1)
    a.label('L_no_nonce')
    T = 32
    hf, G2, r_, d48, t1, t2_, t3, t4 = [vr(T+i) for i in range(8)]
    a.v_lshrrev_b32(hf, 5, 'v1'); a.v_bfe_u32(G2, 'v1', 4, 1); a.v_bfe_u32(r_, 'v1', 2, 2)
    a.v_and_b32(d48, 1, 'v1'); a.v_lshlrev_b32(d48, 1, d48); a.v_bfe_u32(t1, 'v1', 1, 1); a.v_or_b32(d48, d48, t1)
    a.v_lshl_add_u32(d48, G2, 2, d48); a.v_lshlrev_b32(d48, 3, d48)
    a.v_lshrrev_b32(t1, 1, r_); a.v_lshlrev_b32(t1, 6, t1); a.v_add_u32(t1, d48, t1)
    a.v_lshl_add_u32(t2_, hf, 3, r_)
    a.v_lshlrev_b32(t3, 7, t2_); a.v_add_u32('v2', t3, t1)
    a.v_xor_b32('v3', 64, 'v2')
    a.v_add_u32('v4', hex(2*SLOT), 'v2'); a.v_add_u32('v5', hex(2*SLOT), 'v3')
    a.v_mul_u32_u24('v14', 320, t2_); a.v_add_u32('v14', 'v14', d48)
    a.v_add_u32('v15', hex(2*SLOT), 'v14')
    a.v_and_b32(t3, 31, 'v1'); a.v_bfe_u32(t4, 'v1', 1, 3); a.v_xor_b32(t4, t4, hf); a.v_lshlrev_b32(t4, 4, t4)
    a.s_lshl_b32('s3', 's39', 12); a.s_add_u32('s3', 's3', 20480)
    a.v_lshl_add_u32(G2, t3, 7, t4); a.v_add_u32('v6', 's3', G2)
    for s in range(1, 4): a.v_xor_b32(vr(6+s), 32*s, 'v6')
    for s in range(4): a.v_add_u32(vr(10+s), hex(2*SLOT), vr(6+s))
    a.v_mul_u32_u24('v16', 320, t3); a.v_bfe_u32('v17', 'v1', 2, 2); a.v_xor_b32('v17', 'v17', hf); a.v_lshl_add_u32('v16', 'v17', 4, 'v16')
    a.s_mul_i32('s3', 's39', 10240); a.s_add_u32('s3', 's3', 3*SLOT); a.v_add_u32('v16', 's3', 'v16')
    a.v_xor_b32('v17', 32, 'v16')
    a.v_lshlrev_b32(LN16, 4, 'v1')
    a.s_lshl_b32('s3', 's36', 2); a.s_add_u32('s3', 's3', 's38')
    a.s_lshl_b32('s4', 's3', 3); a.s_add_u32('s4', 's4', 's40'); a.s_lshl_b32('s4', 's4', 4); a.s_add_u32('s4', 's4', 's39'); a.s_lshl_b32('s45', 's4', 12)
    a.s_add_u32('s45', 's45', hex(PX_OFF))
    a.s_lshl_b32('s3', 's3', 2); a.s_add_u32('s3', 's3', 's41')
    a.s_lshl_b32('s4', 's3', 3); a.s_add_u32('s4', 's4', 's40'); a.s_mul_i32('s4', 's4', 40960); a.s_mul_i32('s5', 's39', 10240); a.s_add_u32('s4', 's4', 's5'); a.s_add_u32('s52', 's4', hex(P_OFF))
    a.s_lshl_b32('s4', 's3', 2); a.s_add_u32('s4', 's4', 's39'); a.s_lshl_b32('s4', 's4', 7); a.s_lshl_b32('s5', 's40', 2); a.s_add_u32('s4', 's4', 's5'); a.s_add_u32('s43', 's4', hex(FP_OFF))

    q = Q(a, 'lgkmcnt', 15)
    def rdA(t, n):
        st_, s = divmod(n, 4); slot = st_ % 4
        base = (2 if slot < 2 else 4) + (t % 2)
        off = (slot % 2) * SLOT + (t//2)*8192 + s*2048
        for e in range(2):
            a.ds_read_b64_tr_b16(vr(AF+4*t+2*e, 2), vr(base), mods=offm(off+e*512))
            q.issue(('A', t, n))
    def rdX(n):
        st_, s = divmod(n, 4); slot = st_ % 4
        base = (6 if slot < 2 else 10) + s
        a.ds_read_b128(vr(XF+4*(n % 2), 4), vr(base), mods=offm((slot % 2)*SLOT + (4096 if st_ < 10 else 0)))
        q.issue(('X', n))
    def mf(t, n):
        q.wait([('A', t, n), ('X', n)])
        a.v_mfma_f32_32x32x16_bf16(vr(ACC+16*t, 16), vr(AF+4*t, 4), vr(XF+4*(n % 2), 4), '0' if n == 0 else vr(ACC+16*t, 16))
    def cvtQ(t):
        for i in range(8): a.v_cvt_pk_bf16_f32(vr(QB+8*t+i), vr(ACC+16*t+2*i), vr(ACC+16*t+2*i+1))
    AF2 = 32
    VF2 = 16
    RTG = [24, 200, 204, 52]
    NK = 48
    VWT = [112, 128, 144, 208, 224]
    OAT = [64, 80, 96, 160, 176]
    def rdW(t, n2):
        s_, k = divmod(n2, 4); st_ = 10 + s_; slot = st_ % 4
        base = 14 if slot < 2 else 15
        off = (slot % 2)*SLOT + k*5120 + t*64
        for e in range(2):
            a.ds_read_b64_tr_b16(vr(AF2+4*t+2*e, 2), vr(base), mods=offm(off+e*1280))
            q.issue(('W', t, n2))
    def rdV(n2):
        s_, k = divmod(n2, 4); st_ = 10 + s_; slot = st_ % 4
        base = (6 if slot < 2 else 10) + k
        a.ds_read_b128(vr(VF2+4*(n2 % 2), 4), vr(base), mods=offm((slot % 2)*SLOT))
        q.issue(('V', n2))
    if OPT['KLATE']: early_issue()
    st.stamp('pre')
    a.s_barrier()
    st.stamp('B0')
    rdX(0)
    for t in range(6): rdA(t, 0)
    def rdK(s12):
        a.ds_read_b128(vr(KF+4*s12, 4), vr(16 + (s12 & 1)), mods=offm((s12 >> 1)*64)); q.issue(('K', s12))
    for n in range(40):
        s = n % 4
        if s < 3:
            rdX(n+1)
            for t in range(6):
                mf(t, n); rdA(t, n+1)
                kn = n - 4 if OPT['KLATE'] else n
                if 0 <= kn < 2 and t < 5: rdK(5*kn + t)
            if OPT['KLATE'] and n == 5:
                q.wait([('K', 9)]); a.s_barrier()
        else:
            for t in range(3): mf(t, n)
            q.waitall()
            vq.wait([('S', n//4 + 1)])
            if n == 23:
                a.v_mov_b32('v28', 0)
                a.buffer_load_dword('v29', 'v28', 's[60:63]', 0, mods='offen sc1'); vq.issue(('N',))
            a.s_barrier()
            if n < 39:
                rdX(n+1); rdA(0, n+1); rdA(1, n+1)
                mf(3, n); rdA(2, n+1); mf(4, n); rdA(3, n+1); mf(5, n); rdA(4, n+1); rdA(5, n+1)
            else:
                rdV(0); rdW(0, 0); rdW(1, 0); rdW(2, 0)
                mf(3, n); rdW(3, 0); cvtQ(0); mf(4, n); rdW(4, 0); cvtQ(1); mf(5, n); cvtQ(2)
    st.stamp('qdone')
    vq.wait([('K',)])
    def mS(s12):
        a.v_mfma_f32_32x32x16_bf16(vr(SA, 16), vr(KF+4*s12, 4), vr(QB+4*s12, 4), '0' if s12 == 0 else vr(SA, 16))
    mS(0); mS(1); cvtQ(3); mS(2); mS(3); cvtQ(4); mS(4); mS(5); cvtQ(5)
    for s12 in range(6, 12): mS(s12)
    st.stamp('sdone')
    S = lambda j: vr(SA+j)
    m0_, m1_, a0_, a1_ = 'v52', 'v53', 'v54', 'v55'
    c = 192 ** -0.5 * 1.4426950408889634
    cbits = struct.unpack('<I', struct.pack('<f', c))[0]
    sm = []
    A = lambda f: sm.append(f)
    A(lambda: a.s_mov_b32('s46', hex(cbits)))
    A(lambda: a.v_max3_f32(m0_, S(0), S(1), S(2)))
    for j in range(3, 15, 2): A(lambda j=j: a.v_max3_f32(m0_, m0_, S(j), S(j+1)))
    A(lambda: a.v_max_f32(m0_, m0_, S(15)))
    A(lambda: a.v_mov_b32(m1_, m0_))
    A(lambda: a.v_permlane32_swap_b32(m0_, m1_))
    A(lambda: a.v_max_f32(m0_, m0_, m1_))
    A(lambda: a.v_mul_f32(m0_, 's46', m0_))
    for j in range(16): A(lambda j=j: a.v_fma_f32(S(j), S(j), 's46', '-' + m0_))
    for j in range(16): A(lambda j=j: a.v_exp_f32(S(j), S(j)))
    A(lambda: a.v_add_f32(a0_, S(0), S(1))); A(lambda: a.v_add_f32(a1_, S(2), S(3)))
    for j in range(4, 16, 2):
        A(lambda j=j: a.v_add_f32(a0_, a0_, S(j))); A(lambda j=j: a.v_add_f32(a1_, a1_, S(j+1)))
    A(lambda: a.v_add_f32(a0_, a0_, a1_))
    A(lambda: a.v_mov_b32(a1_, a0_))
    A(lambda: a.v_permlane32_swap_b32(a0_, a1_))
    A(lambda: a.v_add_f32(a0_, a0_, a1_))
    A(lambda: a.v_rcp_f32(a0_, a0_))
    for j in range(16): A(lambda j=j: a.v_mul_f32(S(j), S(j), a0_))
    PR = {0: 56, 1: 240, 2: 248, 3: 192}
    for i in range(8): A(lambda i=i: a.v_cvt_pk_bf16_f32(vr(PR[0]+i), S(2*i), S(2*i+1)))
    def sm_step(k):
        for _ in range(k):
            if sm: sm.pop(0)()
    TG = 32
    def publish():
        vq.wait([('N',)])
        a.v_readfirstlane_b32('s47', 'v29')
        a.s_cmp_lg_u32('s47', 0); a.s_cbranch_scc1('L_have_nonce')
        get_nonce(a, 'v29', 's47', 'cp')
        a.label('L_have_nonce')
        vq.q = []
        assert not sm
        for s_ in range(4):
            g_ = RTG[s_]
            a.v_mov_b32(vr(g_), vr(PR[0]+2*s_)); a.v_mov_b32(vr(g_+1), 's47')
            a.v_mov_b32(vr(g_+2), vr(PR[0]+2*s_+1)); a.v_mov_b32(vr(g_+3), 's47')
        a.s_lshl_b32('s3', 's41', 14); a.s_add_u32('s3', 's3', 's45')
        for s_ in range(4):
            a.buffer_store_dwordx4(vr(RTG[s_], 4), LN16, 's[32:35]', 's3', mods=M('offen', offm(s_*1024), 'sc1')); vq.issue(('PS',))
        st.stamp('pstored')
    def mw(t, n2):
        q.wait([('W', t, n2), ('V', n2)])
        a.v_mfma_f32_32x32x16_bf16(vr(VWT[t], 16), vr(VF2+4*(n2 % 2), 4), vr(AF2+4*t, 4), '0' if n2 % 12 == 0 else vr(VWT[t], 16))
        sm_step(OPT['SMK'])
    def ldP(hr):
        a.s_add_u32('s3', 's41', hr); a.s_and_b32('s3', 's3', 3); a.s_lshl_b32('s3', 's3', 14); a.s_add_u32('s53', 's3', 's45')
        for s_ in range(4):
            a.buffer_load_dwordx4(vr(RTG[s_], 4), LN16, 's[32:35]', 's53', mods=M('offen', offm(s_*1024), 'sc1')); vq.issue(('PL', hr))
    def chkP(hr):
        L = f'L_chkP{hr}'
        a.s_mov_b32('s50', 0)
        a.s_waitcnt('vmcnt(0)'); vq.q = []
        a.s_branch(L + '_c')
        a.label(L)
        for s_ in range(4):
            a.buffer_load_dwordx4(vr(RTG[s_], 4), LN16, 's[32:35]', 's53', mods=M('offen', offm(s_*1024), 'sc1'))
        a.s_waitcnt('vmcnt(0)')
        a.label(L + '_c')
        a.v_xor_b32('v28', 's47', vr(RTG[0]+1))
        for s_ in range(4):
            for o in (1, 3):
                if s_ == 0 and o == 1: continue
                a.v_xor_b32('v29', 's47', vr(RTG[s_]+o)); a.v_or_b32('v28', 'v28', 'v29')
        a.v_cmp_ne_u32('vcc', 0, 'v28')
        a.s_add_u32('s50', 's50', 1)
        a.s_cmp_gt_u32('s50', OPT['SPIN_MAX']); a.s_cbranch_scc1(L + '_d')
        a.s_cmp_lg_u64('vcc', 0); a.s_cbranch_scc1(L)
        a.label(L + '_d')
        for s_ in range(4):
            a.v_mov_b32(vr(PR[hr]+2*s_), vr(RTG[s_])); a.v_mov_b32(vr(PR[hr]+2*s_+1), vr(RTG[s_]+2))
    def cvt_store(dst, acc, sbase, f0):
        for i in range(8): a.v_cvt_pk_bf16_f32(vr(dst+i), vr(acc+2*i), vr(acc+2*i+1))
        for u in range(2):
            f = f0+u
            so = sbase; off = f*1024
            if off >= 4096:
                a.s_add_u32('s46', sbase, hex(off & ~4095)); so = 's46'; off &= 4095
            a.buffer_store_dwordx4(vr(dst+4*u, 4), LN16, 's[32:35]', so, mods=M('offen', offm(off), 'sc1'))
            vq.issue(('ST',))
    cnt = 0
    for n2 in range(NK):
        hr, k12 = divmod(n2, 12)
        s = n2 % 4
        last = (n2 == NK-1)
        if s < 3:
            rdV(n2+1)
            for t in range(5):
                mw(t, n2); rdW(t, n2+1); cnt += 1
        else:
            for t in range(2): mw(t, n2); cnt += 1
            if not last:
                q.waitall(); a.s_barrier()
                if (n2//4) in (1, 4, 7): st.stamp(f'W{n2//4+1}')
                rdV(n2+1); rdW(0, n2+1); rdW(1, n2+1)
                mw(2, n2); rdW(2, n2+1); mw(3, n2); rdW(3, n2+1); mw(4, n2); rdW(4, n2+1)
            else:
                mw(2, n2); mw(3, n2); mw(4, n2)
            cnt += 3
        if n2 == OPT['PUB_K']: publish()
        if k12 == OPT['PL_K'] and hr >= 1: ldP(hr)
        if k12 == OPT['PC_K'] and hr >= 1: chkP(hr)
        if k12 == 11:
            for t in range(5):
                for i in range(8): a.v_cvt_pk_bf16_f32(vr(VWT[t]+i), vr(VWT[t]+2*i), vr(VWT[t]+2*i+1))
                for u in range(2):
                    a.v_mfma_f32_32x32x16_bf16(vr(OAT[t], 16), vr(VWT[t]+4*u, 4), vr(PR[hr]+4*u, 4), '0' if (hr == 0 and u == 0) else vr(OAT[t], 16))
                if hr == 3 and t >= 1: cvt_store(VWT[t-1]+8, OAT[t-1], 's52', 2*(t-1))
    cvt_store(VWT[4]+8, OAT[4], 's52', 8)
    st.stamp('mdone')
    a.s_barrier()
    a.s_waitcnt('vmcnt(0)'); vq.q = []
    a.s_mov_b64('exec', 1)
    a.v_mov_b32('v5', 's47'); a.v_mov_b32('v6', 0)
    a.buffer_store_dword('v5', 'v6', 's[32:35]', 's43', mods='offen sc1')
    a.s_mov_b64('exec', -1)
    if OPT['INSTR']:
        st.stamp('flag')
        a.s_cmp_eq_u32('s39', 0); a.s_cbranch_scc0('L_c_end'); st.flush(1); a.label('L_c_end')
    a.s_endpgm()
    a.label('L_end')
    a.s_endpgm()

def build(path):
    hdr = open('cdna_kernels/%s.s.ref' % NAME).read().split('\n')
    head = [l for l in hdr if l.startswith(';') and '@launch' not in l and 'Override' not in l and 'grid=ceil' not in l]
    out = '\n'.join(head) + '\n'
    out += '; @launch grid=(256,1,1) block=(512,1,1) lds=163840\n'
    out += '.amdgcn_target "amdgcn-amd-amdhsa--gfx950"\n.text\n'
    a = Asm(); gen(a); out += a.finalize()
    out += f""".section .rodata,"a"
.p2align 6
.amdhsa_kernel {KN}
  .amdhsa_next_free_vgpr 256
  .amdhsa_next_free_sgpr 102
  .amdhsa_accum_offset 256
  .amdhsa_group_segment_fixed_size 0
  .amdhsa_kernarg_size 104
  .amdhsa_user_sgpr_count 2
  .amdhsa_user_sgpr_kernarg_segment_ptr 1
  .amdhsa_system_sgpr_workgroup_id_x 1
.end_amdhsa_kernel
"""
    open(path, 'w').write(out)

if __name__ == '__main__':
    path = sys.argv[1]
    for arg in sys.argv[2:]:
        k, v = arg.split('=')
        OPT[k] = int(v) if isinstance(OPT[k], int) else v
    build(path)
```

```python
import sys, struct
from asmlib import Asm, vr, sr

NAME = "concat_heads__gqa_block_cached__mha_block_cached__near_ridge"
KN = NAME + "_kernel"
OPT = dict(NT_KV='', NT_W='', NT_X='', NT_WO='', INSTR=0, SPIN_MAX=200000, CSTAGES=2, PL_K=1, PC_K=9, ROTQ=0, ROTW=0, PUB_K=10, KLATE=1, LOOK=3, SMK=2, XSPLIT=0, PRIO=0, LPRIO=0)
PX_OFF = 0
P_OFF = 16 << 20
P_BYTES = 256*40960
FP_OFF = 28 << 20
N_OFF = FP_OFF + 128*128
WS_SIZE = N_OFF + 128
SLOT = 40960
T_OFF = 64 << 20
NONCE_C = 0x9E3779B9
NST = 22

class Q:
    def __init__(self, a, name, mx): self.a = a; self.q = []; self.name = name; self.mx = mx
    def issue(self, tag): self.q.append(tag)
    def has(self, tag): return tag in self.q
    def wait(self, tags):
        idx = -1
        for i, t in enumerate(self.q):
            if t in tags: idx = i
        if idx < 0: return
        n = min(len(self.q) - 1 - idx, self.mx)
        self.a.s_waitcnt(f'{self.name}({n})')
        self.q = self.q[len(self.q) - n:] if n else []
    def waitall(self):
        self.a.s_waitcnt(f'{self.name}(0)'); self.q = []

class Stamps:
    def __init__(self, a, base_sgpr=64): self.a = a; self.n = 0; self.base = base_sgpr; self.names = []
    def stamp(self, name=''):
        if not OPT['INSTR']: return
        if OPT['INSTR'] == 3 and name not in ('start', 'd', 'k', 'k2', 'q0', 'end', 'pre', 'B0', 'flag'): return
        assert self.n < 16, self.names
        self.a.s_memrealtime(sr(self.base+2*self.n, 2)); self.n += 1; self.names.append(name)
    def flush(self, slot):
        if not OPT['INSTR']: return
        a = self.a
        print(f'stamps slot {slot}:', ' '.join(self.names), file=sys.stderr)
        a.s_waitcnt('lgkmcnt(0)')
        a.s_mov_b32('s96', 's6'); a.s_and_b32('s97', 's7', '0xffff'); a.s_mov_b32('s98', hex(T_OFF + (4 << 20))); a.s_mov_b32('s99', '0x20000')
        a.s_lshl_b32('s3', 's2', 9); a.s_add_u32('s3', 's3', hex(T_OFF + slot*128))
        a.v_mov_b32('v2', 0)
        a.s_mov_b64('exec', 1)
        for i in range(self.n):
            a.v_mov_b32('v3', sr(self.base+2*i))
            a.buffer_store_dword('v3', 'v2', 's[96:99]', 's3', mods=f'offen offset:{4*i}')
        a.s_mov_b64('exec', -1)

def srd(a, d, lo, hi, size):
    a.s_mov_b32(sr(d), sr(lo)); a.s_and_b32(sr(d+1), sr(hi), '0xffff'); a.s_mov_b32(sr(d+2), hex(size)); a.s_mov_b32(sr(d+3), '0x20000')
def M(*parts): return ' '.join(p for p in parts if p)
def offm(off): return f'offset:{off}' if off else ''

def get_nonce(a, vtmp, sdst, tag):
    L = f'nonce_{tag}'
    a.s_mov_b32('s51', 0)
    a.label(L)
    a.v_mov_b32(vtmp, 0)
    a.buffer_load_dword(vtmp, vtmp, 's[60:63]', 0, mods='offen sc1')
    a.s_waitcnt('vmcnt(0)')
    a.v_readfirstlane_b32(sdst, vtmp)
    a.s_add_u32('s51', 's51', 1)
    a.s_cmp_gt_u32('s51', OPT['SPIN_MAX']); a.s_cbranch_scc1(L + '_done')
    a.s_cmp_eq_u32(sdst, 0); a.s_cbranch_scc1(L)
    a.label(L + '_done')

def ring_setup(a, lw, vb, sa='s44', sb='s45'):
    a.v_lshrrev_b32('v2', 3, 'v1')
    a.v_and_b32('v3', 7, 'v1')
    a.v_lshrrev_b32('v4', 1, 'v2'); a.v_and_b32('v5', 1, 'v4'); a.v_lshlrev_b32('v5', 2, 'v5'); a.v_xor_b32('v5', 'v3', 'v5')
    a.v_lshlrev_b32('v5', 4, 'v5')
    a.s_mul_i32('s3', 's37', 384)
    a.s_mul_i32('s4', lw, 16*12288)
    a.s_add_u32('s3', 's3', 's4')
    a.s_mov_b32('s5', 12288)
    a.v_mul_lo_u32('v6', 'v2', 's5')
    a.v_add_u32('v6', 'v6', 'v5')
    a.v_add_u32(vr(vb), 's3', 'v6')
    a.v_add_u32(vr(vb+1), hex(8*12288), vr(vb))
    a.s_lshl_b32('s3', 's38', 7); a.s_lshl_b32('s4', lw, 5); a.s_add_u32('s3', 's3', 's4'); a.s_mul_i32('s3', 's3', 1280)
    a.s_mov_b32('s5', 1280)
    a.v_mul_lo_u32('v6', 'v2', 's5'); a.v_add_u32('v6', 's3', 'v6')
    a.v_xor_b32('v5', 'v3', 'v4'); a.v_lshlrev_b32('v7', 4, 'v5')
    a.v_xor_b32('v5', 4, 'v5'); a.v_lshlrev_b32('v5', 4, 'v5')
    for i in range(4):
        a.v_add_u32(vr(vb+4+i), 'v6', 'v7' if i % 2 == 0 else 'v5')
        if i: a.v_add_u32(vr(vb+4+i), hex(i*8*1280), vr(vb+4+i))
    a.s_lshl_b32(sa, lw, 11)
    a.s_lshl_b32(sb, lw, 12)

def q_items(a, vq, vb, s, sa='s44', sb='s45'):
    slot = (s % 4) * SLOT
    items = []
    for rg in range(2):
        for t2 in range(3):
            def f(rg=rg, t2=t2, first=(rg == 0 and t2 == 0)):
                if first:
                    if OPT['ROTQ']:
                        a.s_mul_i32('s3', 's38', 5); a.s_lshr_b32('s3', 's3', 1); a.s_add_u32('s3', 's3', s)
                        a.s_cmp_ge_u32('s3', 10); a.s_cselect_b32('s4', 10, 0); a.s_sub_u32('s3', 's3', 's4')
                        a.s_mul_i32('s46', 's3', 64*12288); a.s_lshl_b32('s47', 's3', 7)
                    else:
                        a.s_mov_b32('s46', hex(s*64*12288)); a.s_mov_b32('s47', s*128)
                a.s_add_u32('m0', sa, hex(slot + t2*8192 + rg*1024 - t2*128))
                a.buffer_load_dwordx4(vr(vb+rg), 's[20:23]', 's46', mods=M('offen', offm(t2*128), OPT['NT_W'], 'lds')); vq.issue(('S', s))
            items.append(f)
    for i in range(4):
        def f(i=i):
            a.s_add_u32('m0', sb, hex(slot + 24576 + i*1024))
            a.buffer_load_dwordx4(vr(vb+4+i), 's[16:19]', 's47', mods=M('offen', OPT['NT_X'], 'lds')); vq.issue(('S', s))
        items.append(f)
    return items

def gen(a):
    a.raw('.p2align 8'); a.raw(f'.globl {KN}'); a.raw(f'.type {KN},@function'); a.label(KN)
    a.s_cmp_ge_u32('s2', 256); a.s_cbranch_scc1('L_end')
    a.s_and_b32('s3', 's2', 7)
    a.s_lshr_b32('s36', 's3', 2)
    a.s_mul_i32('s4', 's36', 40)
    a.s_load_dwordx8('s[8:15]', 's[0:1]', 's4')
    a.s_add_u32('s4', 's4', 32)
    a.s_load_dwordx2('s[48:49]', 's[0:1]', 's4')
    a.s_load_dwordx4('s[56:59]', 's[0:1]', 80)
    a.s_load_dwordx2('s[6:7]', 's[0:1]', 96)
    a.s_and_b32('s3', 's3', 3)
    a.s_lshl_b32('s3', 's3', 3)
    a.s_lshr_b32('s4', 's2', 3)
    a.s_and_b32('s5', 's4', 7)
    a.s_or_b32('s37', 's3', 's5')
    a.s_lshr_b32('s38', 's4', 3)
    a.v_lshrrev_b32('v1', 6, 'v0')
    a.v_readfirstlane_b32('s39', 'v1')
    a.v_and_b32('v1', 63, 'v0')
    a.s_lshr_b32('s40', 's37', 2)
    a.s_and_b32('s41', 's37', 3)
    a.s_cmp_lt_u32('s39', 4); a.s_cbranch_scc1('L_compute')

    a.s_sub_u32('s42', 's39', 4)
    if OPT['LPRIO']: a.s_setprio(OPT['LPRIO'])
    st = Stamps(a); st.stamp('start')
    ring_setup(a, 's42', 8)
    if OPT['INSTR'] == 3:
        a.s_waitcnt('lgkmcnt(0)'); st.stamp('k'); a.s_waitcnt('lgkmcnt(0)'); st.stamp('k2'); a.s_waitcnt('lgkmcnt(0)')
    if OPT['INSTR'] == 2: st.stamp('setup')
    a.s_waitcnt('lgkmcnt(0)')
    if OPT['INSTR'] == 2: st.stamp('karg')
    srd(a, 20, 14, 15, 640*6144*2)
    srd(a, 16, 8, 9, 512*640*2)
    vq = Q(a, 'vmcnt', 63)
    for k_, f in enumerate(q_items(a, vq, 8, 0)):
        if OPT['XSPLIT'] and k_ >= 6: break
        f()
        if OPT['INSTR'] == 3: st.stamp('d')
    if OPT['INSTR'] == 2: st.stamp('st0')
    srd(a, 24, 10, 11, 16*32*12288)
    a.s_mov_b32('s5', 3277)
    a.s_lshl_b32('s3', 's38', 2); a.s_add_u32('s3', 's3', 's42'); a.s_lshl_b32('s3', 's3', 5); a.s_add_u32('s3', 's3', 's37'); a.s_mul_i32('s3', 's3', 12288)
    for b in range(5):
        a.v_add_u32('v2', 64*b, 'v1')
        a.v_mul_lo_u32('v3', 'v2', 's5'); a.v_lshrrev_b32('v3', 16, 'v3')
        a.v_mul_u32_u24('v4', 20, 'v3'); a.v_sub_u32('v4', 'v2', 'v4')
        a.v_bfe_u32('v5', 'v3', 2, 2); a.v_xor_b32('v4', 'v4', 'v5')
        a.v_mul_u32_u24('v3', 384, 'v3'); a.v_lshl_add_u32('v3', 'v4', 4, 'v3')
        a.v_add_u32(vr(32+b), 's3', 'v3')
    a.s_mul_i32('s50', 's42', 10240)
    a.s_mov_b32('s46', 16*384)
    for aa in range(2):
        for b in range(5):
            a.s_add_u32('m0', 's50', hex(3*SLOT + aa*5120 + b*1024))
            a.buffer_load_dwordx4(vr(32+b), 's[24:27]', 's46' if aa else 0, mods=M('offen', OPT['NT_KV'], 'lds')); vq.issue(('S', 1 if OPT['KLATE'] else 0))
    if OPT['INSTR'] == 2: st.stamp('kst')
    srd(a, 28, 12, 13, 16*32*12288)
    srd(a, 52, 48, 49, 6144*640*2)
    srd(a, 32, 6, 7, WS_SIZE)
    srd(a, 60, 58, 59, 256)
    srd(a, 56, 56, 57, 16*32*1280*2)
    WV = 16
    a.s_mov_b32('s5', 3277)
    a.s_mul_i32('s3', 's40', 768*1280); a.s_mul_i32('s4', 's41', 320); a.s_add_u32('s3', 's3', 's4')
    a.s_mul_i32('s4', 's42', 16*1280); a.s_add_u32('s3', 's3', 's4')
    a.s_mov_b32('s4', 1280)
    for b in range(5):
        a.v_add_u32('v2', 64*b, 'v1')
        a.v_mul_lo_u32('v3', 'v2', 's5'); a.v_lshrrev_b32('v3', 16, 'v3')
        a.v_mul_u32_u24('v4', 20, 'v3'); a.v_sub_u32('v4', 'v2', 'v4')
        a.v_mul_lo_u32('v3', 'v3', 's4'); a.v_lshl_add_u32('v3', 'v4', 4, 'v3')
        a.v_add_u32(vr(WV+b), 's3', 'v3')
    VV = 21
    a.v_lshrrev_b32('v2', 3, 'v1'); a.v_and_b32('v3', 7, 'v1'); a.v_lshrrev_b32('v4', 1, 'v2')
    a.v_xor_b32('v5', 'v3', 'v4'); a.v_lshlrev_b32('v7', 4, 'v5'); a.v_xor_b32('v5', 4, 'v5'); a.v_lshlrev_b32('v5', 4, 'v5')
    a.v_mul_u32_u24('v6', 384, 'v2')
    a.s_lshl_b32('s3', 's38', 2); a.s_add_u32('s3', 's3', 's42'); a.s_lshl_b32('s3', 's3', 5); a.s_lshl_b32('s4', 's40', 2); a.s_add_u32('s3', 's3', 's4'); a.s_mul_i32('s3', 's3', 12288)
    a.v_add_u32('v6', 's3', 'v6')
    for i in range(4):
        a.v_add_u32(vr(VV+i), 'v6', 'v7' if i % 2 == 0 else 'v5')
        if i: a.v_add_u32(vr(VV+i), hex(i*8*384), vr(VV+i))
    a.s_mul_i32('s50', 's42', 5120)
    def w_items(s):
        sg = s - 10; hr, sub = divmod(sg, 3)
        slot = (s % 4) * SLOT
        items = []
        for b in range(5):
            def f(b=b):
                if b == 0:
                    a.s_add_u32('s3', 's41', hr); a.s_and_b32('s3', 's3', 3)
                    a.s_mul_i32('s46', 's3', 192*1280); a.s_mul_i32('s47', 's3', 12288)
                    if OPT['ROTW']:
                        a.s_add_u32('s3', 's38', sub)
                        a.s_cmp_ge_u32('s3', 3); a.s_cselect_b32('s4', 3, 0); a.s_sub_u32('s3', 's3', 's4')
                        a.s_cmp_ge_u32('s3', 3); a.s_cselect_b32('s4', 3, 0); a.s_sub_u32('s3', 's3', 's4')
                        a.s_mul_i32('s4', 's3', 64*1280); a.s_add_u32('s46', 's46', 's4')
                        a.s_lshl_b32('s4', 's3', 7); a.s_add_u32('s47', 's47', 's4')
                    else:
                        a.s_add_u32('s46', 's46', hex(64*sub*1280)); a.s_add_u32('s47', 's47', sub*128)
                a.s_add_u32('m0', 's50', hex(slot + b*1024))
                a.buffer_load_dwordx4(vr(WV+b), 's[52:55]', 's46', mods=M('offen', OPT['NT_WO'], 'lds')); vq.issue(('S', s))
            items.append(f)
        for i in range(4):
            def f(i=i):
                a.s_add_u32('m0', 's45', hex(slot + 20480 + i*1024))
                a.buffer_load_dwordx4(vr(VV+i), 's[28:31]', 's47', mods=M('offen', OPT['NT_KV'], 'lds')); vq.issue(('S', s))
            items.append(f)
        return items
    def stage_items(s): return q_items(a, vq, 8, s) if s < 10 else w_items(s)
    CS = OPT['CSTAGES']
    st.stamp('pre')
    vq.wait([('S', 0)]); st.stamp('q0'); a.s_barrier()
    nxt = CS + 1
    for i in range(0, NST-1):
        if i in ((2, 4, 6, 8, 10, 12, 15, 18) if OPT['INSTR'] == 1 else (1, 2, 3, 4)): st.stamp(f'B{i}')
        if OPT['KLATE'] and i == 1:
            while nxt <= 2:
                for f in stage_items(nxt): f()
                nxt += 1
            a.s_barrier()
        while nxt <= min(NST-1, i+OPT['LOOK']) and not (i == 0 and nxt == 3):
            for f in stage_items(nxt): f()
            nxt += 1
        vq.wait([('S', i+1)])
        a.s_barrier()
    get_nonce(a, 'v2', 's43', 'ld')
    a.s_lshl_b32('s3', 's36', 2); a.s_add_u32('s3', 's3', 's38'); a.s_lshl_b32('s3', 's3', 2); a.s_add_u32('s3', 's3', 's41')
    a.s_lshr_b32('s4', 's40', 1)
    a.s_lshl_b32('s5', 's3', 2); a.s_add_u32('s5', 's5', 's4'); a.s_lshl_b32('s5', 's5', 7); a.s_add_u32('s44', 's5', hex(FP_OFF))
    a.s_and_b32('s5', 's40', 1); a.s_mul_i32('s5', 's5', 5)
    a.s_add_u32('s45', 's5', 's42')
    a.s_mul_i32('s46', 's3', 8*40960); a.s_mul_i32('s47', 's4', 10240); a.s_add_u32('s46', 's46', 's47'); a.s_add_u32('s46', 's46', hex(P_OFF))
    a.s_lshl_b32('s47', 's38', 2); a.s_add_u32('s47', 's47', 's4'); a.s_mul_i32('s47', 's47', 32*2560)
    a.s_mul_i32('s3', 's36', 1280); a.s_add_u32('s47', 's47', 's3'); a.s_mul_i32('s3', 's41', 320); a.s_add_u32('s47', 's47', 's3')
    a.v_and_b32('v2', 31, 'v1'); a.v_mul_u32_u24('v2', 2560, 'v2'); a.v_lshrrev_b32('v3', 5, 'v1'); a.v_lshl_add_u32('v2', 'v3', 4, 'v2')
    a.v_and_b32('v4', 7, 'v1'); a.v_lshlrev_b32('v4', 2, 'v4')
    a.v_lshlrev_b32('v30', 4, 'v1')
    a.s_barrier()
    st.stamp('D')
    a.s_mov_b32('s50', 0)
    a.label('L_pollP')
    a.buffer_load_dword('v5', 'v4', 's[32:35]', 's44', mods='offen sc1')
    a.s_waitcnt('vmcnt(0)')
    a.v_cmp_ne_u32('vcc', 's43', 'v5')
    a.s_add_u32('s50', 's50', 1)
    a.s_cmp_gt_u32('s50', OPT['SPIN_MAX']); a.s_cbranch_scc1('L_pollP_done')
    a.s_cmp_lg_u64('vcc', 0); a.s_cbranch_scc1('L_pollP')
    a.label('L_pollP_done')
    st.stamp('polled')
    def reduce_load(stu, base):
        a.s_lshl_b32('s3', stu, 10); a.s_add_u32('s3', 's3', 's46')
        for kk in range(8):
            a.buffer_load_dwordx4(vr(base+4*kk, 4), 'v30', 's[32:35]', 's3', mods='offen sc1')
            if kk < 7: a.s_add_u32('s3', 's3', 40960)
    def reduce_sum(stu, base, first_wait, dst):
        for kk in range(8):
            a.s_waitcnt(f'vmcnt({first_wait-kk})')
            for i in range(4):
                src = vr(base+4*kk+i)
                if kk == 0:
                    a.v_lshlrev_b32(vr(8+2*i), 16, src); a.v_and_b32(vr(9+2*i), '0xffff0000', src)
                else:
                    a.v_lshlrev_b32('v16', 16, src); a.v_and_b32('v17', '0xffff0000', src)
                    a.v_add_f32(vr(8+2*i), vr(8+2*i), 'v16'); a.v_add_f32(vr(9+2*i), vr(9+2*i), 'v17')
        for i in range(4): a.v_cvt_pk_bf16_f32(vr(dst+i), vr(8+2*i), vr(9+2*i))
        a.s_lshl_b32('s3', stu, 5); a.s_add_u32('s3', 's3', 's47')
        a.buffer_store_dwordx4(vr(dst, 4), 'v2', 's[56:59]', 's3', mods='offen')
    a.s_cmp_eq_u32('s42', 0); a.s_cbranch_scc1('L_red2')
    reduce_load('s45', 64); reduce_sum('s45', 64, 7, 24)
    a.s_branch('L_red_done')
    a.label('L_red2')
    a.s_add_u32('s50', 's45', 4)
    reduce_load('s45', 64); reduce_load('s50', 96)
    reduce_sum('s45', 64, 15, 24)
    reduce_sum('s50', 96, 8, 20)
    a.label('L_red_done')
    if OPT['INSTR']:
        st.stamp('red'); a.s_waitcnt('vmcnt(0)'); st.stamp('end')
        a.s_cmp_eq_u32('s42', 0); a.s_cbranch_scc0('L_ld_end'); st.flush(0); a.label('L_ld_end')
    a.s_endpgm()

    a.label('L_compute')
    if OPT['PRIO']: a.s_setprio(OPT['PRIO'])
    AF = 32; XF = 56; ACC = 64; SA = 240; KF = 160; QB = 64
    LN16 = 'v31'
    st = Stamps(a)
    vq = Q(a, 'vmcnt', 63)
    a.v_mov_b32('v30', hex(N_OFF))
    a.s_waitcnt('lgkmcnt(0)')
    srd(a, 32, 6, 7, WS_SIZE)
    def early_setup():
        ring_setup(a, 's39', 208, 's54', 's55')
        srd(a, 20, 14, 15, 640*6144*2)
        srd(a, 16, 8, 9, 512*640*2)
        srd(a, 24, 10, 11, 16*32*12288)
        a.v_and_b32('v216', 31, 'v1'); a.v_mul_u32_u24('v216', 384, 'v216'); a.v_lshrrev_b32('v3', 5, 'v1'); a.v_lshl_add_u32('v216', 'v3', 4, 'v216')
        a.s_lshl_b32('s3', 's38', 2); a.s_add_u32('s3', 's3', 's39'); a.s_lshl_b32('s3', 's3', 5); a.s_add_u32('s3', 's3', 's37'); a.s_mul_i32('s56', 's3', 12288)
    def early_issue():
        for s_ in range(1, OPT['CSTAGES']+1):
            for f in q_items(a, vq, 208, s_, 's54', 's55'): f()
        for s12 in (10, 11):
            a.buffer_load_dwordx4(vr(KF+4*s12, 4), 'v216', 's[24:27]', 's56', mods=M('offen', offm(s12*32), OPT['NT_KV'])); vq.issue(('K',))
    srd(a, 60, 58, 59, 256)
    a.s_or_b32('s50', 's2', 's39'); a.s_cmp_eq_u32('s50', 0); a.s_cbranch_scc0('L_no_nonce0')
    a.buffer_load_dword('v29', 'v30', 's[32:35]', 0, mods='offen sc1')
    a.label('L_no_nonce0')
    early_setup()
    if OPT['XSPLIT']:
        a.s_mov_b32('s47', 0)
        for f in q_items(a, vq, 208, 0, 's54', 's55')[6:]: f()
    if not OPT['KLATE']: early_issue()
    a.s_cmp_eq_u32('s50', 0); a.s_cbranch_scc0('L_no_nonce')
    a.s_waitcnt(('vmcnt(4)' if OPT['XSPLIT'] else 'vmcnt(0)') if OPT['KLATE'] else f"vmcnt({10*OPT['CSTAGES']+2})")
    a.v_add_u32('v29', hex(NONCE_C), 'v29')
    a.v_cmp_eq_u32('vcc', 0, 'v29')
    a.v_mov_b32('v4', hex(NONCE_C))
    a.v_cndmask_b32('v29', 'v29', 'v4', 'vcc')
    a.s_mov_b64('exec', 1)
    a.buffer_store_dword('v29', 'v30', 's[32:35]', 0, mods='offen sc1')
    a.v_mov_b32('v4', 0)
    a.buffer_store_dword('v29', 'v4', 's[60:63]', 0, mods='offen sc1')
    a.s_mov_b64('exec', -1)
    a.label('L_no_nonce')
    T = 32
    hf, G2, r_, d48, t1, t2_, t3, t4 = [vr(T+i) for i in range(8)]
    a.v_lshrrev_b32(hf, 5, 'v1'); a.v_bfe_u32(G2, 'v1', 4, 1); a.v_bfe_u32(r_, 'v1', 2, 2)
    a.v_and_b32(d48, 1, 'v1'); a.v_lshlrev_b32(d48, 1, d48); a.v_bfe_u32(t1, 'v1', 1, 1); a.v_or_b32(d48, d48, t1)
    a.v_lshl_add_u32(d48, G2, 2, d48); a.v_lshlrev_b32(d48, 3, d48)
    a.v_lshrrev_b32(t1, 1, r_); a.v_lshlrev_b32(t1, 6, t1); a.v_add_u32(t1, d48, t1)
    a.v_lshl_add_u32(t2_, hf, 3, r_)
    a.v_lshlrev_b32(t3, 7, t2_); a.v_add_u32('v2', t3, t1)
    a.v_xor_b32('v3', 64, 'v2')
    a.v_add_u32('v4', hex(2*SLOT), 'v2'); a.v_add_u32('v5', hex(2*SLOT), 'v3')
    a.v_mul_u32_u24('v14', 320, t2_); a.v_add_u32('v14', 'v14', d48)
    a.v_add_u32('v15', hex(2*SLOT), 'v14')
    a.v_and_b32(t3, 31, 'v1'); a.v_bfe_u32(t4, 'v1', 1, 3); a.v_xor_b32(t4, t4, hf); a.v_lshlrev_b32(t4, 4, t4)
    a.s_lshl_b32('s3', 's39', 12); a.s_add_u32('s3', 's3', 20480)
    a.v_lshl_add_u32(G2, t3, 7, t4); a.v_add_u32('v6', 's3', G2)
    for s in range(1, 4): a.v_xor_b32(vr(6+s), 32*s, 'v6')
    for s in range(4): a.v_add_u32(vr(10+s), hex(2*SLOT), vr(6+s))
    a.v_mul_u32_u24('v16', 320, t3); a.v_bfe_u32('v17', 'v1', 2, 2); a.v_xor_b32('v17', 'v17', hf); a.v_lshl_add_u32('v16', 'v17', 4, 'v16')
    a.s_mul_i32('s3', 's39', 10240); a.s_add_u32('s3', 's3', 3*SLOT); a.v_add_u32('v16', 's3', 'v16')
    a.v_xor_b32('v17', 32, 'v16')
    a.v_lshlrev_b32(LN16, 4, 'v1')
    a.s_lshl_b32('s3', 's36', 2); a.s_add_u32('s3', 's3', 's38')
    a.s_lshl_b32('s4', 's3', 3); a.s_add_u32('s4', 's4', 's40'); a.s_lshl_b32('s4', 's4', 4); a.s_add_u32('s4', 's4', 's39'); a.s_lshl_b32('s45', 's4', 12)
    a.s_add_u32('s45', 's45', hex(PX_OFF))
    a.s_lshl_b32('s3', 's3', 2); a.s_add_u32('s3', 's3', 's41')
    a.s_lshl_b32('s4', 's3', 3); a.s_add_u32('s4', 's4', 's40'); a.s_mul_i32('s4', 's4', 40960); a.s_mul_i32('s5', 's39', 10240); a.s_add_u32('s4', 's4', 's5'); a.s_add_u32('s52', 's4', hex(P_OFF))
    a.s_lshl_b32('s4', 's3', 2); a.s_add_u32('s4', 's4', 's39'); a.s_lshl_b32('s4', 's4', 7); a.s_lshl_b32('s5', 's40', 2); a.s_add_u32('s4', 's4', 's5'); a.s_add_u32('s43', 's4', hex(FP_OFF))

    q = Q(a, 'lgkmcnt', 15)
    def rdA(t, n):
        st_, s = divmod(n, 4); slot = st_ % 4
        base = (2 if slot < 2 else 4) + (t % 2)
        off = (slot % 2) * SLOT + (t//2)*8192 + s*2048
        for e in range(2):
            a.ds_read_b64_tr_b16(vr(AF+4*t+2*e, 2), vr(base), mods=offm(off+e*512))
            q.issue(('A', t, n))
    def rdX(n):
        st_, s = divmod(n, 4); slot = st_ % 4
        base = (6 if slot < 2 else 10) + s
        a.ds_read_b128(vr(XF+4*(n % 2), 4), vr(base), mods=offm((slot % 2)*SLOT + (4096 if st_ < 10 else 0)))
        q.issue(('X', n))
    def mf(t, n):
        q.wait([('A', t, n), ('X', n)])
        a.v_mfma_f32_32x32x16_bf16(vr(ACC+16*t, 16), vr(AF+4*t, 4), vr(XF+4*(n % 2), 4), '0' if n == 0 else vr(ACC+16*t, 16))
    def cvtQ(t):
        for i in range(8): a.v_cvt_pk_bf16_f32(vr(QB+8*t+i), vr(ACC+16*t+2*i), vr(ACC+16*t+2*i+1))
    AF2 = 32
    VF2 = 16
    RTG = [24, 200, 204, 52]
    NK = 48
    VWT = [112, 128, 144, 208, 224]
    OAT = [64, 80, 96, 160, 176]
    def rdW(t, n2):
        s_, k = divmod(n2, 4); st_ = 10 + s_; slot = st_ % 4
        base = 14 if slot < 2 else 15
        off = (slot % 2)*SLOT + k*5120 + t*64
        for e in range(2):
            a.ds_read_b64_tr_b16(vr(AF2+4*t+2*e, 2), vr(base), mods=offm(off+e*1280))
            q.issue(('W', t, n2))
    def rdV(n2):
        s_, k = divmod(n2, 4); st_ = 10 + s_; slot = st_ % 4
        base = (6 if slot < 2 else 10) + k
        a.ds_read_b128(vr(VF2+4*(n2 % 2), 4), vr(base), mods=offm((slot % 2)*SLOT))
        q.issue(('V', n2))
    if OPT['KLATE']: early_issue()
    vq.wait([('S', 0)])
    st.stamp('pre')
    a.s_barrier()
    st.stamp('B0')
    rdX(0)
    for t in range(6): rdA(t, 0)
    def rdK(s12):
        a.ds_read_b128(vr(KF+4*s12, 4), vr(16 + (s12 & 1)), mods=offm((s12 >> 1)*64)); q.issue(('K', s12))
    for n in range(40):
        s = n % 4
        if s < 3:
            rdX(n+1)
            for t in range(6):
                mf(t, n); rdA(t, n+1)
                kn = n - 4 if OPT['KLATE'] else n
                if 0 <= kn < 2 and t < 5: rdK(5*kn + t)
            if OPT['KLATE'] and n == 5:
                q.wait([('K', 9)]); a.s_barrier()
        else:
            for t in range(3): mf(t, n)
            q.waitall()
            vq.wait([('S', n//4 + 1)])
            if n == 23:
                a.v_mov_b32('v28', 0)
                a.buffer_load_dword('v29', 'v28', 's[60:63]', 0, mods='offen sc1'); vq.issue(('N',))
            a.s_barrier()
            if n < 39:
                rdX(n+1); rdA(0, n+1); rdA(1, n+1)
                mf(3, n); rdA(2, n+1); mf(4, n); rdA(3, n+1); mf(5, n); rdA(4, n+1); rdA(5, n+1)
            else:
                rdV(0); rdW(0, 0); rdW(1, 0); rdW(2, 0)
                mf(3, n); rdW(3, 0); cvtQ(0); mf(4, n); rdW(4, 0); cvtQ(1); mf(5, n); cvtQ(2)
    st.stamp('qdone')
    vq.wait([('K',)])
    def mS(s12):
        a.v_mfma_f32_32x32x16_bf16(vr(SA, 16), vr(KF+4*s12, 4), vr(QB+4*s12, 4), '0' if s12 == 0 else vr(SA, 16))
    mS(0); mS(1); cvtQ(3); mS(2); mS(3); cvtQ(4); mS(4); mS(5); cvtQ(5)
    for s12 in range(6, 12): mS(s12)
    st.stamp('sdone')
    S = lambda j: vr(SA+j)
    m0_, m1_, a0_, a1_ = 'v52', 'v53', 'v54', 'v55'
    c = 192 ** -0.5 * 1.4426950408889634
    cbits = struct.unpack('<I', struct.pack('<f', c))[0]
    sm = []
    A = lambda f: sm.append(f)
    A(lambda: a.s_mov_b32('s46', hex(cbits)))
    A(lambda: a.v_max3_f32(m0_, S(0), S(1), S(2)))
    for j in range(3, 15, 2): A(lambda j=j: a.v_max3_f32(m0_, m0_, S(j), S(j+1)))
    A(lambda: a.v_max_f32(m0_, m0_, S(15)))
    A(lambda: a.v_mov_b32(m1_, m0_))
    A(lambda: a.v_permlane32_swap_b32(m0_, m1_))
    A(lambda: a.v_max_f32(m0_, m0_, m1_))
    A(lambda: a.v_mul_f32(m0_, 's46', m0_))
    for j in range(16): A(lambda j=j: a.v_fma_f32(S(j), S(j), 's46', '-' + m0_))
    for j in range(16): A(lambda j=j: a.v_exp_f32(S(j), S(j)))
    A(lambda: a.v_add_f32(a0_, S(0), S(1))); A(lambda: a.v_add_f32(a1_, S(2), S(3)))
    for j in range(4, 16, 2):
        A(lambda j=j: a.v_add_f32(a0_, a0_, S(j))); A(lambda j=j: a.v_add_f32(a1_, a1_, S(j+1)))
    A(lambda: a.v_add_f32(a0_, a0_, a1_))
    A(lambda: a.v_mov_b32(a1_, a0_))
    A(lambda: a.v_permlane32_swap_b32(a0_, a1_))
    A(lambda: a.v_add_f32(a0_, a0_, a1_))
    A(lambda: a.v_rcp_f32(a0_, a0_))
    for j in range(16): A(lambda j=j: a.v_mul_f32(S(j), S(j), a0_))
    PR = {0: 56, 1: 240, 2: 248, 3: 192}
    for i in range(8): A(lambda i=i: a.v_cvt_pk_bf16_f32(vr(PR[0]+i), S(2*i), S(2*i+1)))
    def sm_step(k):
        for _ in range(k):
            if sm: sm.pop(0)()
    TG = 32
    def publish():
        vq.wait([('N',)])
        a.v_readfirstlane_b32('s47', 'v29')
        a.s_cmp_lg_u32('s47', 0); a.s_cbranch_scc1('L_have_nonce')
        get_nonce(a, 'v29', 's47', 'cp')
        a.label('L_have_nonce')
        vq.q = []
        assert not sm
        for s_ in range(4):
            g_ = RTG[s_]
            a.v_mov_b32(vr(g_), vr(PR[0]+2*s_)); a.v_mov_b32(vr(g_+1), 's47')
            a.v_mov_b32(vr(g_+2), vr(PR[0]+2*s_+1)); a.v_mov_b32(vr(g_+3), 's47')
        a.s_lshl_b32('s3', 's41', 14); a.s_add_u32('s3', 's3', 's45')
        for s_ in range(4):
            a.buffer_store_dwordx4(vr(RTG[s_], 4), LN16, 's[32:35]', 's3', mods=M('offen', offm(s_*1024), 'sc1')); vq.issue(('PS',))
        st.stamp('pstored')
    def mw(t, n2):
        q.wait([('W', t, n2), ('V', n2)])
        a.v_mfma_f32_32x32x16_bf16(vr(VWT[t], 16), vr(VF2+4*(n2 % 2), 4), vr(AF2+4*t, 4), '0' if n2 % 12 == 0 else vr(VWT[t], 16))
        sm_step(OPT['SMK'])
    def ldP(hr):
        a.s_add_u32('s3', 's41', hr); a.s_and_b32('s3', 's3', 3); a.s_lshl_b32('s3', 's3', 14); a.s_add_u32('s53', 's3', 's45')
        for s_ in range(4):
            a.buffer_load_dwordx4(vr(RTG[s_], 4), LN16, 's[32:35]', 's53', mods=M('offen', offm(s_*1024), 'sc1')); vq.issue(('PL', hr))
    def chkP(hr):
        L = f'L_chkP{hr}'
        a.s_mov_b32('s50', 0)
        a.s_waitcnt('vmcnt(0)'); vq.q = []
        a.s_branch(L + '_c')
        a.label(L)
        for s_ in range(4):
            a.buffer_load_dwordx4(vr(RTG[s_], 4), LN16, 's[32:35]', 's53', mods=M('offen', offm(s_*1024), 'sc1'))
        a.s_waitcnt('vmcnt(0)')
        a.label(L + '_c')
        a.v_xor_b32('v28', 's47', vr(RTG[0]+1))
        for s_ in range(4):
            for o in (1, 3):
                if s_ == 0 and o == 1: continue
                a.v_xor_b32('v29', 's47', vr(RTG[s_]+o)); a.v_or_b32('v28', 'v28', 'v29')
        a.v_cmp_ne_u32('vcc', 0, 'v28')
        a.s_add_u32('s50', 's50', 1)
        a.s_cmp_gt_u32('s50', OPT['SPIN_MAX']); a.s_cbranch_scc1(L + '_d')
        a.s_cmp_lg_u64('vcc', 0); a.s_cbranch_scc1(L)
        a.label(L + '_d')
        for s_ in range(4):
            a.v_mov_b32(vr(PR[hr]+2*s_), vr(RTG[s_])); a.v_mov_b32(vr(PR[hr]+2*s_+1), vr(RTG[s_]+2))
    def cvt_store(dst, acc, sbase, f0):
        for i in range(8): a.v_cvt_pk_bf16_f32(vr(dst+i), vr(acc+2*i), vr(acc+2*i+1))
        for u in range(2):
            f = f0+u
            so = sbase; off = f*1024
            if off >= 4096:
                a.s_add_u32('s46', sbase, hex(off & ~4095)); so = 's46'; off &= 4095
            a.buffer_store_dwordx4(vr(dst+4*u, 4), LN16, 's[32:35]', so, mods=M('offen', offm(off), 'sc1'))
            vq.issue(('ST',))
    cnt = 0
    for n2 in range(NK):
        hr, k12 = divmod(n2, 12)
        s = n2 % 4
        last = (n2 == NK-1)
        if s < 3:
            rdV(n2+1)
            for t in range(5):
                mw(t, n2); rdW(t, n2+1); cnt += 1
        else:
            for t in range(2): mw(t, n2); cnt += 1
            if not last:
                q.waitall(); a.s_barrier()
                if (n2//4) in (1, 4, 7): st.stamp(f'W{n2//4+1}')
                rdV(n2+1); rdW(0, n2+1); rdW(1, n2+1)
                mw(2, n2); rdW(2, n2+1); mw(3, n2); rdW(3, n2+1); mw(4, n2); rdW(4, n2+1)
            else:
                mw(2, n2); mw(3, n2); mw(4, n2)
            cnt += 3
        if n2 == OPT['PUB_K']: publish()
        if k12 == OPT['PL_K'] and hr >= 1: ldP(hr)
        if k12 == OPT['PC_K'] and hr >= 1: chkP(hr)
        if k12 == 11:
            for t in range(5):
                for i in range(8): a.v_cvt_pk_bf16_f32(vr(VWT[t]+i), vr(VWT[t]+2*i), vr(VWT[t]+2*i+1))
                for u in range(2):
                    a.v_mfma_f32_32x32x16_bf16(vr(OAT[t], 16), vr(VWT[t]+4*u, 4), vr(PR[hr]+4*u, 4), '0' if (hr == 0 and u == 0) else vr(OAT[t], 16))
                if hr == 3 and t >= 1: cvt_store(VWT[t-1]+8, OAT[t-1], 's52', 2*(t-1))
    cvt_store(VWT[4]+8, OAT[4], 's52', 8)
    st.stamp('mdone')
    a.s_barrier()
    a.s_waitcnt('vmcnt(0)'); vq.q = []
    a.s_mov_b64('exec', 1)
    a.v_mov_b32('v5', 's47'); a.v_mov_b32('v6', 0)
    a.buffer_store_dword('v5', 'v6', 's[32:35]', 's43', mods='offen sc1')
    a.s_mov_b64('exec', -1)
    if OPT['INSTR']:
        st.stamp('flag')
        a.s_cmp_eq_u32('s39', 0); a.s_cbranch_scc0('L_c_end'); st.flush(1); a.label('L_c_end')
    a.s_endpgm()
    a.label('L_end')
    a.s_endpgm()

def build(path):
    hdr = open('cdna_kernels/%s.s.ref' % NAME).read().split('\n')
    head = [l for l in hdr if l.startswith(';') and '@launch' not in l and 'Override' not in l and 'grid=ceil' not in l]
    out = '\n'.join(head) + '\n'
    out += '; @launch grid=(256,1,1) block=(512,1,1) lds=163840\n'
    out += '.amdgcn_target "amdgcn-amd-amdhsa--gfx950"\n.text\n'
    a = Asm(); gen(a); out += a.finalize()
    out += f""".section .rodata,"a"
.p2align 6
.amdhsa_kernel {KN}
  .amdhsa_next_free_vgpr 256
  .amdhsa_next_free_sgpr 102
  .amdhsa_accum_offset 256
  .amdhsa_group_segment_fixed_size 0
  .amdhsa_kernarg_size 104
  .amdhsa_user_sgpr_count 2
  .amdhsa_user_sgpr_kernarg_segment_ptr 1
  .amdhsa_system_sgpr_workgroup_id_x 1
.end_amdhsa_kernel
"""
    open(path, 'w').write(out)

if __name__ == '__main__':
    path = sys.argv[1]
    for arg in sys.argv[2:]:
        k, v = arg.split('=')
        OPT[k] = int(v) if isinstance(OPT[k], int) else v
    build(path)
```

```python
import sys, struct
from asmlib import Asm, vr, sr

NAME = "concat_heads__gqa_block_cached__mha_block_cached__near_ridge"
KN = NAME + "_kernel"
OPT = dict(NT_KV='', NT_W='', NT_X='', NT_WO='', INSTR=0, SPIN_MAX=200000, CSTAGES=2, PL_K=1, PC_K=9, ROTQ=0, ROTW=0, PUB_K=10, KLATE=1, LOOK=3, SMK=2, XSPLIT=0, PRIO=0, LPRIO=0, PPOLL=0, PSLEEP=4, KS=2, KI=0)
PX_OFF = 0
P_OFF = 16 << 20
P_BYTES = 256*40960
FP_OFF = 28 << 20
N_OFF = FP_OFF + 128*128
WS_SIZE = N_OFF + 128
SLOT = 40960
T_OFF = 64 << 20
NONCE_C = 0x9E3779B9
NST = 22
def slot_of(s):
    E = OPT['KS'] + 4
    if s < E: return s % 3
    if s == E: return 3
    return slot_of(s - 4)

class Q:
    def __init__(self, a, name, mx): self.a = a; self.q = []; self.name = name; self.mx = mx
    def issue(self, tag): self.q.append(tag)
    def has(self, tag): return tag in self.q
    def wait(self, tags):
        idx = -1
        for i, t in enumerate(self.q):
            if t in tags: idx = i
        if idx < 0: return
        n = min(len(self.q) - 1 - idx, self.mx)
        self.a.s_waitcnt(f'{self.name}({n})')
        self.q = self.q[len(self.q) - n:] if n else []
    def waitall(self):
        self.a.s_waitcnt(f'{self.name}(0)'); self.q = []

class Stamps:
    def __init__(self, a, base_sgpr=64): self.a = a; self.n = 0; self.base = base_sgpr; self.names = []
    def stamp(self, name=''):
        if not OPT['INSTR']: return
        if OPT['INSTR'] == 3 and name not in ('start', 'd', 'k', 'k2', 'q0', 'end', 'pre', 'B0', 'flag'): return
        assert self.n < 16, self.names
        self.a.s_memrealtime(sr(self.base+2*self.n, 2)); self.n += 1; self.names.append(name)
    def flush(self, slot):
        if not OPT['INSTR']: return
        a = self.a
        print(f'stamps slot {slot}:', ' '.join(self.names), file=sys.stderr)
        a.s_waitcnt('lgkmcnt(0)')
        a.s_mov_b32('s96', 's6'); a.s_and_b32('s97', 's7', '0xffff'); a.s_mov_b32('s98', hex(T_OFF + (4 << 20))); a.s_mov_b32('s99', '0x20000')
        a.s_lshl_b32('s3', 's2', 9); a.s_add_u32('s3', 's3', hex(T_OFF + slot*128))
        a.v_mov_b32('v2', 0)
        a.s_mov_b64('exec', 1)
        for i in range(self.n):
            a.v_mov_b32('v3', sr(self.base+2*i))
            a.buffer_store_dword('v3', 'v2', 's[96:99]', 's3', mods=f'offen offset:{4*i}')
        a.s_mov_b64('exec', -1)

def srd(a, d, lo, hi, size):
    a.s_mov_b32(sr(d), sr(lo)); a.s_and_b32(sr(d+1), sr(hi), '0xffff'); a.s_mov_b32(sr(d+2), hex(size)); a.s_mov_b32(sr(d+3), '0x20000')
def M(*parts): return ' '.join(p for p in parts if p)
def offm(off): return f'offset:{off}' if off else ''

def get_nonce(a, vtmp, sdst, tag):
    L = f'nonce_{tag}'
    a.s_mov_b32('s51', 0)
    a.label(L)
    a.v_mov_b32(vtmp, 0)
    a.buffer_load_dword(vtmp, vtmp, 's[60:63]', 0, mods='offen sc1')
    a.s_waitcnt('vmcnt(0)')
    a.v_readfirstlane_b32(sdst, vtmp)
    a.s_add_u32('s51', 's51', 1)
    a.s_cmp_gt_u32('s51', OPT['SPIN_MAX']); a.s_cbranch_scc1(L + '_done')
    a.s_cmp_eq_u32(sdst, 0); a.s_cbranch_scc1(L)
    a.label(L + '_done')

def ring_setup(a, lw, vb, sa='s44', sb='s45'):
    a.v_lshrrev_b32('v2', 3, 'v1')
    a.v_and_b32('v3', 7, 'v1')
    a.v_lshrrev_b32('v4', 1, 'v2'); a.v_and_b32('v5', 1, 'v4'); a.v_lshlrev_b32('v5', 2, 'v5'); a.v_xor_b32('v5', 'v3', 'v5')
    a.v_lshlrev_b32('v5', 4, 'v5')
    a.s_mul_i32('s3', 's37', 384)
    a.s_mul_i32('s4', lw, 16*12288)
    a.s_add_u32('s3', 's3', 's4')
    a.s_mov_b32('s5', 12288)
    a.v_mul_lo_u32('v6', 'v2', 's5')
    a.v_add_u32('v6', 'v6', 'v5')
    a.v_add_u32(vr(vb), 's3', 'v6')
    a.v_add_u32(vr(vb+1), hex(8*12288), vr(vb))
    a.s_lshl_b32('s3', 's38', 7); a.s_lshl_b32('s4', lw, 5); a.s_add_u32('s3', 's3', 's4'); a.s_mul_i32('s3', 's3', 1280)
    a.s_mov_b32('s5', 1280)
    a.v_mul_lo_u32('v6', 'v2', 's5'); a.v_add_u32('v6', 's3', 'v6')
    a.v_xor_b32('v5', 'v3', 'v4'); a.v_lshlrev_b32('v7', 4, 'v5')
    a.v_xor_b32('v5', 4, 'v5'); a.v_lshlrev_b32('v5', 4, 'v5')
    for i in range(4):
        a.v_add_u32(vr(vb+4+i), 'v6', 'v7' if i % 2 == 0 else 'v5')
        if i: a.v_add_u32(vr(vb+4+i), hex(i*8*1280), vr(vb+4+i))
    a.s_lshl_b32(sa, lw, 11)
    a.s_lshl_b32(sb, lw, 12)

def q_items(a, vq, vb, s, sa='s44', sb='s45'):
    slot = slot_of(s) * SLOT
    items = []
    for rg in range(2):
        for t2 in range(3):
            def f(rg=rg, t2=t2, first=(rg == 0 and t2 == 0)):
                if first:
                    if OPT['ROTQ']:
                        a.s_mul_i32('s3', 's38', 5); a.s_lshr_b32('s3', 's3', 1); a.s_add_u32('s3', 's3', s)
                        a.s_cmp_ge_u32('s3', 10); a.s_cselect_b32('s4', 10, 0); a.s_sub_u32('s3', 's3', 's4')
                        a.s_mul_i32('s46', 's3', 64*12288); a.s_lshl_b32('s47', 's3', 7)
                    else:
                        a.s_mov_b32('s46', hex(s*64*12288)); a.s_mov_b32('s47', s*128)
                a.s_add_u32('m0', sa, hex(slot + t2*8192 + rg*1024 - t2*128))
                a.buffer_load_dwordx4(vr(vb+rg), 's[20:23]', 's46', mods=M('offen', offm(t2*128), OPT['NT_W'], 'lds')); vq.issue(('S', s))
            items.append(f)
    for i in range(4):
        def f(i=i):
            a.s_add_u32('m0', sb, hex(slot + 24576 + i*1024))
            a.buffer_load_dwordx4(vr(vb+4+i), 's[16:19]', 's47', mods=M('offen', OPT['NT_X'], 'lds')); vq.issue(('S', s))
        items.append(f)
    return items

def gen(a):
    a.raw('.p2align 8'); a.raw(f'.globl {KN}'); a.raw(f'.type {KN},@function'); a.label(KN)
    a.s_cmp_ge_u32('s2', 256); a.s_cbranch_scc1('L_end')
    a.s_and_b32('s3', 's2', 7)
    a.s_lshr_b32('s36', 's3', 2)
    a.s_mul_i32('s4', 's36', 40)
    a.s_load_dwordx8('s[8:15]', 's[0:1]', 's4')
    a.s_add_u32('s4', 's4', 32)
    a.s_load_dwordx2('s[48:49]', 's[0:1]', 's4')
    a.s_load_dwordx4('s[56:59]', 's[0:1]', 80)
    a.s_load_dwordx2('s[6:7]', 's[0:1]', 96)
    a.s_and_b32('s3', 's3', 3)
    a.s_lshl_b32('s3', 's3', 3)
    a.s_lshr_b32('s4', 's2', 3)
    a.s_and_b32('s5', 's4', 7)
    a.s_or_b32('s37', 's3', 's5')
    a.s_lshr_b32('s38', 's4', 3)
    a.v_lshrrev_b32('v1', 6, 'v0')
    a.v_readfirstlane_b32('s39', 'v1')
    a.v_and_b32('v1', 63, 'v0')
    a.s_lshr_b32('s40', 's37', 2)
    a.s_and_b32('s41', 's37', 3)
    a.s_cmp_lt_u32('s39', 4); a.s_cbranch_scc1('L_compute')

    a.s_sub_u32('s42', 's39', 4)
    if OPT['LPRIO']: a.s_setprio(OPT['LPRIO'])
    st = Stamps(a); st.stamp('start')
    ring_setup(a, 's42', 8)
    if OPT['INSTR'] == 3:
        a.s_waitcnt('lgkmcnt(0)'); st.stamp('k'); a.s_waitcnt('lgkmcnt(0)'); st.stamp('k2'); a.s_waitcnt('lgkmcnt(0)')
    if OPT['INSTR'] == 2: st.stamp('setup')
    a.s_waitcnt('lgkmcnt(0)')
    if OPT['INSTR'] == 2: st.stamp('karg')
    srd(a, 20, 14, 15, 640*6144*2)
    srd(a, 16, 8, 9, 512*640*2)
    vq = Q(a, 'vmcnt', 63)
    for k_, f in enumerate(q_items(a, vq, 8, 0)):
        if OPT['XSPLIT'] and k_ >= 6: break
        f()
        if OPT['INSTR'] == 3: st.stamp('d')
    if OPT['INSTR'] == 2: st.stamp('st0')
    if OPT['INSTR'] == 2: st.stamp('kst')
    srd(a, 28, 12, 13, 16*32*12288)
    srd(a, 52, 48, 49, 6144*640*2)
    srd(a, 32, 6, 7, WS_SIZE)
    srd(a, 60, 58, 59, 256)
    srd(a, 56, 56, 57, 16*32*1280*2)
    WV = 16
    a.s_mov_b32('s5', 3277)
    a.s_mul_i32('s3', 's40', 768*1280); a.s_mul_i32('s4', 's41', 320); a.s_add_u32('s3', 's3', 's4')
    a.s_mul_i32('s4', 's42', 16*1280); a.s_add_u32('s3', 's3', 's4')
    a.s_mov_b32('s4', 1280)
    for b in range(5):
        a.v_add_u32('v2', 64*b, 'v1')
        a.v_mul_lo_u32('v3', 'v2', 's5'); a.v_lshrrev_b32('v3', 16, 'v3')
        a.v_mul_u32_u24('v4', 20, 'v3'); a.v_sub_u32('v4', 'v2', 'v4')
        a.v_mul_lo_u32('v3', 'v3', 's4'); a.v_lshl_add_u32('v3', 'v4', 4, 'v3')
        a.v_add_u32(vr(WV+b), 's3', 'v3')
    VV = 21
    a.v_lshrrev_b32('v2', 3, 'v1'); a.v_and_b32('v3', 7, 'v1'); a.v_lshrrev_b32('v4', 1, 'v2')
    a.v_xor_b32('v5', 'v3', 'v4'); a.v_lshlrev_b32('v7', 4, 'v5'); a.v_xor_b32('v5', 4, 'v5'); a.v_lshlrev_b32('v5', 4, 'v5')
    a.v_mul_u32_u24('v6', 384, 'v2')
    a.s_lshl_b32('s3', 's38', 2); a.s_add_u32('s3', 's3', 's42'); a.s_lshl_b32('s3', 's3', 5); a.s_lshl_b32('s4', 's40', 2); a.s_add_u32('s3', 's3', 's4'); a.s_mul_i32('s3', 's3', 12288)
    a.v_add_u32('v6', 's3', 'v6')
    for i in range(4):
        a.v_add_u32(vr(VV+i), 'v6', 'v7' if i % 2 == 0 else 'v5')
        if i: a.v_add_u32(vr(VV+i), hex(i*8*384), vr(VV+i))
    a.s_mul_i32('s50', 's42', 5120)
    def w_items(s):
        sg = s - 10; hr, sub = divmod(sg, 3)
        slot = slot_of(s) * SLOT
        items = []
        for b in range(5):
            def f(b=b):
                if b == 0:
                    a.s_add_u32('s3', 's41', hr); a.s_and_b32('s3', 's3', 3)
                    a.s_mul_i32('s46', 's3', 192*1280); a.s_mul_i32('s47', 's3', 12288)
                    if OPT['ROTW']:
                        a.s_add_u32('s3', 's38', sub)
                        a.s_cmp_ge_u32('s3', 3); a.s_cselect_b32('s4', 3, 0); a.s_sub_u32('s3', 's3', 's4')
                        a.s_cmp_ge_u32('s3', 3); a.s_cselect_b32('s4', 3, 0); a.s_sub_u32('s3', 's3', 's4')
                        a.s_mul_i32('s4', 's3', 64*1280); a.s_add_u32('s46', 's46', 's4')
                        a.s_lshl_b32('s4', 's3', 7); a.s_add_u32('s47', 's47', 's4')
                    else:
                        a.s_add_u32('s46', 's46', hex(64*sub*1280)); a.s_add_u32('s47', 's47', sub*128)
                a.s_add_u32('m0', 's50', hex(slot + b*1024))
                a.buffer_load_dwordx4(vr(WV+b), 's[52:55]', 's46', mods=M('offen', OPT['NT_WO'], 'lds')); vq.issue(('S', s))
            items.append(f)
        for i in range(4):
            def f(i=i):
                a.s_add_u32('m0', 's45', hex(slot + 20480 + i*1024))
                a.buffer_load_dwordx4(vr(VV+i), 's[28:31]', 's47', mods=M('offen', OPT['NT_KV'], 'lds')); vq.issue(('S', s))
            items.append(f)
        return items
    def stage_items(s): return q_items(a, vq, 8, s) if s < 10 else w_items(s)
    def k_stage():
        srd(a, 24, 10, 11, 16*32*12288)
        a.s_mov_b32('s5', 3277)
        a.s_lshl_b32('s3', 's38', 2); a.s_add_u32('s3', 's3', 's42'); a.s_lshl_b32('s3', 's3', 5); a.s_add_u32('s3', 's3', 's37'); a.s_mul_i32('s3', 's3', 12288)
        for b in range(5):
            a.v_add_u32('v2', 64*b, 'v1')
            a.v_mul_lo_u32('v3', 'v2', 's5'); a.v_lshrrev_b32('v3', 16, 'v3')
            a.v_mul_u32_u24('v4', 20, 'v3'); a.v_sub_u32('v4', 'v2', 'v4')
            a.v_bfe_u32('v5', 'v3', 2, 2); a.v_xor_b32('v4', 'v4', 'v5')
            a.v_mul_u32_u24('v3', 384, 'v3'); a.v_lshl_add_u32('v3', 'v4', 4, 'v3')
            a.v_add_u32(vr(32+b), 's3', 'v3')
        a.s_mul_i32('s51', 's42', 10240)
        a.s_mov_b32('s46', 16*384)
        for aa in range(2):
            for b in range(5):
                a.s_add_u32('m0', 's51', hex(3*SLOT + aa*5120 + b*1024))
                a.buffer_load_dwordx4(vr(32+b), 's[24:27]', 's46' if aa else 0, mods=M('offen', OPT['NT_KV'], 'lds')); vq.issue(('S', OPT['KS']))
    CS = OPT['CSTAGES']
    st.stamp('pre')
    vq.wait([('S', 0)]); st.stamp('q0'); a.s_barrier()
    nxt = CS + 1
    for i in range(0, NST-1):
        if i in ((2, 4, 6, 8, 10, 12, 15, 18) if OPT['INSTR'] == 1 else (1, 2, 3, 4)): st.stamp(f'B{i}')
        def allowed(sg):
            if sg <= 2: return True
            if sg < OPT['KS'] + 4: return i >= sg - 2
            return i >= sg - 3
        while nxt <= NST-1 and allowed(nxt):
            for f in stage_items(nxt): f()
            nxt += 1
        if i == OPT['KI']: k_stage()
        vq.wait([('S', i+1)])
        a.s_barrier()
    get_nonce(a, 'v2', 's43', 'ld')
    a.s_lshl_b32('s3', 's36', 2); a.s_add_u32('s3', 's3', 's38'); a.s_lshl_b32('s3', 's3', 2); a.s_add_u32('s3', 's3', 's41')
    a.s_lshr_b32('s4', 's40', 1)
    a.s_lshl_b32('s5', 's3', 2); a.s_add_u32('s5', 's5', 's4'); a.s_lshl_b32('s5', 's5', 7); a.s_add_u32('s44', 's5', hex(FP_OFF))
    a.s_and_b32('s5', 's40', 1); a.s_mul_i32('s5', 's5', 5)
    a.s_add_u32('s45', 's5', 's42')
    a.s_mul_i32('s46', 's3', 8*40960); a.s_mul_i32('s47', 's4', 10240); a.s_add_u32('s46', 's46', 's47'); a.s_add_u32('s46', 's46', hex(P_OFF))
    a.s_lshl_b32('s47', 's38', 2); a.s_add_u32('s47', 's47', 's4'); a.s_mul_i32('s47', 's47', 32*2560)
    a.s_mul_i32('s3', 's36', 1280); a.s_add_u32('s47', 's47', 's3'); a.s_mul_i32('s3', 's41', 320); a.s_add_u32('s47', 's47', 's3')
    a.v_and_b32('v2', 31, 'v1'); a.v_mul_u32_u24('v2', 2560, 'v2'); a.v_lshrrev_b32('v3', 5, 'v1'); a.v_lshl_add_u32('v2', 'v3', 4, 'v2')
    a.v_and_b32('v4', 7, 'v1'); a.v_lshlrev_b32('v4', 2, 'v4')
    a.v_lshlrev_b32('v30', 4, 'v1')
    a.s_barrier()
    st.stamp('D')
    if OPT['PPOLL']:
        a.s_cmp_eq_u32('s42', 0); a.s_cbranch_scc0('L_pollP_done')
        a.s_mov_b32('s50', 0)
        a.buffer_load_dword('v5', 'v4', 's[32:35]', 's44', mods='offen sc1')
        a.s_sleep(OPT['PSLEEP'])
        a.buffer_load_dword('v6', 'v4', 's[32:35]', 's44', mods='offen sc1')
        a.s_sleep(OPT['PSLEEP'])
        a.buffer_load_dword('v7', 'v4', 's[32:35]', 's44', mods='offen sc1')
        a.label('L_pollP')
        for r_ in ('v5', 'v6', 'v7'):
            a.s_waitcnt('vmcnt(2)')
            a.v_cmp_ne_u32('vcc', 's43', r_)
            a.s_cmp_lg_u64('vcc', 0); a.s_cbranch_scc0('L_pollP_ok')
            a.buffer_load_dword(r_, 'v4', 's[32:35]', 's44', mods='offen sc1')
        a.s_add_u32('s50', 's50', 1)
        a.s_cmp_le_u32('s50', OPT['SPIN_MAX']); a.s_cbranch_scc1('L_pollP')
        a.label('L_pollP_ok')
        a.label('L_pollP_done')
        a.s_barrier()
    else:
        a.s_mov_b32('s50', 0)
        a.label('L_pollP')
        a.buffer_load_dword('v5', 'v4', 's[32:35]', 's44', mods='offen sc1')
        a.s_waitcnt('vmcnt(0)')
        a.v_cmp_ne_u32('vcc', 's43', 'v5')
        a.s_add_u32('s50', 's50', 1)
        a.s_cmp_gt_u32('s50', OPT['SPIN_MAX']); a.s_cbranch_scc1('L_pollP_done')
        a.s_cmp_lg_u64('vcc', 0); a.s_cbranch_scc1('L_pollP')
        a.label('L_pollP_done')
    st.stamp('polled')
    def reduce_load(stu, base):
        a.s_lshl_b32('s3', stu, 10); a.s_add_u32('s3', 's3', 's46')
        for kk in range(8):
            a.buffer_load_dwordx4(vr(base+4*kk, 4), 'v30', 's[32:35]', 's3', mods='offen sc1')
            if kk < 7: a.s_add_u32('s3', 's3', 40960)
    def reduce_sum(stu, base, first_wait, dst):
        for kk in range(8):
            a.s_waitcnt(f'vmcnt({first_wait-kk})')
            for i in range(4):
                src = vr(base+4*kk+i)
                if kk == 0:
                    a.v_lshlrev_b32(vr(8+2*i), 16, src); a.v_and_b32(vr(9+2*i), '0xffff0000', src)
                else:
                    a.v_lshlrev_b32('v16', 16, src); a.v_and_b32('v17', '0xffff0000', src)
                    a.v_add_f32(vr(8+2*i), vr(8+2*i), 'v16'); a.v_add_f32(vr(9+2*i), vr(9+2*i), 'v17')
        for i in range(4): a.v_cvt_pk_bf16_f32(vr(dst+i), vr(8+2*i), vr(9+2*i))
        a.s_lshl_b32('s3', stu, 5); a.s_add_u32('s3', 's3', 's47')
        a.buffer_store_dwordx4(vr(dst, 4), 'v2', 's[56:59]', 's3', mods='offen')
    a.s_cmp_eq_u32('s42', 0); a.s_cbranch_scc1('L_red2')
    reduce_load('s45', 64); reduce_sum('s45', 64, 7, 24)
    a.s_branch('L_red_done')
    a.label('L_red2')
    a.s_add_u32('s50', 's45', 4)
    reduce_load('s45', 64); reduce_load('s50', 96)
    reduce_sum('s45', 64, 15, 24)
    reduce_sum('s50', 96, 8, 20)
    a.label('L_red_done')
    if OPT['INSTR']:
        st.stamp('red'); a.s_waitcnt('vmcnt(0)'); st.stamp('end')
        a.s_cmp_eq_u32('s42', 0); a.s_cbranch_scc0('L_ld_end'); st.flush(0); a.label('L_ld_end')
    a.s_endpgm()

    a.label('L_compute')
    if OPT['PRIO']: a.s_setprio(OPT['PRIO'])
    AF = 32; XF = 56; ACC = 64; SA = 240; KF = 160; QB = 64
    LN16 = 'v31'
    st = Stamps(a)
    vq = Q(a, 'vmcnt', 63)
    a.v_mov_b32('v30', hex(N_OFF))
    a.s_waitcnt('lgkmcnt(0)')
    srd(a, 32, 6, 7, WS_SIZE)
    def early_setup():
        ring_setup(a, 's39', 208, 's54', 's55')
        srd(a, 20, 14, 15, 640*6144*2)
        srd(a, 16, 8, 9, 512*640*2)
        srd(a, 24, 10, 11, 16*32*12288)
        a.v_and_b32('v216', 31, 'v1'); a.v_mul_u32_u24('v216', 384, 'v216'); a.v_lshrrev_b32('v3', 5, 'v1'); a.v_lshl_add_u32('v216', 'v3', 4, 'v216')
        a.s_lshl_b32('s3', 's38', 2); a.s_add_u32('s3', 's3', 's39'); a.s_lshl_b32('s3', 's3', 5); a.s_add_u32('s3', 's3', 's37'); a.s_mul_i32('s56', 's3', 12288)
    def early_issue():
        for s_ in range(1, OPT['CSTAGES']+1):
            for f in q_items(a, vq, 208, s_, 's54', 's55'): f()
        for s12 in (10, 11):
            a.buffer_load_dwordx4(vr(KF+4*s12, 4), 'v216', 's[24:27]', 's56', mods=M('offen', offm(s12*32), OPT['NT_KV'])); vq.issue(('K',))
    srd(a, 60, 58, 59, 256)
    a.s_or_b32('s50', 's2', 's39'); a.s_cmp_eq_u32('s50', 0); a.s_cbranch_scc0('L_no_nonce0')
    a.buffer_load_dword('v29', 'v30', 's[32:35]', 0, mods='offen sc1')
    a.label('L_no_nonce0')
    early_setup()
    if OPT['XSPLIT']:
        a.s_mov_b32('s47', 0)
        for f in q_items(a, vq, 208, 0, 's54', 's55')[6:]: f()
    if not OPT['KLATE']: early_issue()
    a.s_cmp_eq_u32('s50', 0); a.s_cbranch_scc0('L_no_nonce')
    a.s_waitcnt(('vmcnt(4)' if OPT['XSPLIT'] else 'vmcnt(0)') if OPT['KLATE'] else f"vmcnt({10*OPT['CSTAGES']+2})")
    a.v_add_u32('v29', hex(NONCE_C), 'v29')
    a.v_cmp_eq_u32('vcc', 0, 'v29')
    a.v_mov_b32('v4', hex(NONCE_C))
    a.v_cndmask_b32('v29', 'v29', 'v4', 'vcc')
    a.s_mov_b64('exec', 1)
    a.buffer_store_dword('v29', 'v30', 's[32:35]', 0, mods='offen sc1')
    a.v_mov_b32('v4', 0)
    a.buffer_store_dword('v29', 'v4', 's[60:63]', 0, mods='offen sc1')
    a.s_mov_b64('exec', -1)
    a.label('L_no_nonce')
    T = 32
    hf, G2, r_, d48, t1, t2_, t3, t4 = [vr(T+i) for i in range(8)]
    a.v_lshrrev_b32(hf, 5, 'v1'); a.v_bfe_u32(G2, 'v1', 4, 1); a.v_bfe_u32(r_, 'v1', 2, 2)
    a.v_and_b32(d48, 1, 'v1'); a.v_lshlrev_b32(d48, 1, d48); a.v_bfe_u32(t1, 'v1', 1, 1); a.v_or_b32(d48, d48, t1)
    a.v_lshl_add_u32(d48, G2, 2, d48); a.v_lshlrev_b32(d48, 3, d48)
    a.v_lshrrev_b32(t1, 1, r_); a.v_lshlrev_b32(t1, 6, t1); a.v_add_u32(t1, d48, t1)
    a.v_lshl_add_u32(t2_, hf, 3, r_)
    a.v_lshlrev_b32(t3, 7, t2_); a.v_add_u32('v2', t3, t1)
    a.v_xor_b32('v3', 64, 'v2')
    a.v_add_u32('v4', hex(2*SLOT), 'v2'); a.v_add_u32('v5', hex(2*SLOT), 'v3')
    a.v_mul_u32_u24('v14', 320, t2_); a.v_add_u32('v14', 'v14', d48)
    a.v_add_u32('v15', hex(2*SLOT), 'v14')
    a.v_and_b32(t3, 31, 'v1'); a.v_bfe_u32(t4, 'v1', 1, 3); a.v_xor_b32(t4, t4, hf); a.v_lshlrev_b32(t4, 4, t4)
    a.s_lshl_b32('s3', 's39', 12); a.s_add_u32('s3', 's3', 20480)
    a.v_lshl_add_u32(G2, t3, 7, t4); a.v_add_u32('v6', 's3', G2)
    for s in range(1, 4): a.v_xor_b32(vr(6+s), 32*s, 'v6')
    for s in range(4): a.v_add_u32(vr(10+s), hex(2*SLOT), vr(6+s))
    a.v_mul_u32_u24('v16', 320, t3); a.v_bfe_u32('v17', 'v1', 2, 2); a.v_xor_b32('v17', 'v17', hf); a.v_lshl_add_u32('v16', 'v17', 4, 'v16')
    a.s_mul_i32('s3', 's39', 10240); a.s_add_u32('s3', 's3', 3*SLOT); a.v_add_u32('v16', 's3', 'v16')
    a.v_xor_b32('v17', 32, 'v16')
    a.v_lshlrev_b32(LN16, 4, 'v1')
    a.s_lshl_b32('s3', 's36', 2); a.s_add_u32('s3', 's3', 's38')
    a.s_lshl_b32('s4', 's3', 3); a.s_add_u32('s4', 's4', 's40'); a.s_lshl_b32('s4', 's4', 4); a.s_add_u32('s4', 's4', 's39'); a.s_lshl_b32('s45', 's4', 12)
    a.s_add_u32('s45', 's45', hex(PX_OFF))
    a.s_lshl_b32('s3', 's3', 2); a.s_add_u32('s3', 's3', 's41')
    a.s_lshl_b32('s4', 's3', 3); a.s_add_u32('s4', 's4', 's40'); a.s_mul_i32('s4', 's4', 40960); a.s_mul_i32('s5', 's39', 10240); a.s_add_u32('s4', 's4', 's5'); a.s_add_u32('s52', 's4', hex(P_OFF))
    a.s_lshl_b32('s4', 's3', 2); a.s_add_u32('s4', 's4', 's39'); a.s_lshl_b32('s4', 's4', 7); a.s_lshl_b32('s5', 's40', 2); a.s_add_u32('s4', 's4', 's5'); a.s_add_u32('s43', 's4', hex(FP_OFF))

    q = Q(a, 'lgkmcnt', 15)
    def rdA(t, n):
        st_, s = divmod(n, 4); slot = slot_of(st_)
        base = (2 if slot < 2 else 4) + (t % 2)
        off = (slot % 2) * SLOT + (t//2)*8192 + s*2048
        for e in range(2):
            a.ds_read_b64_tr_b16(vr(AF+4*t+2*e, 2), vr(base), mods=offm(off+e*512))
            q.issue(('A', t, n))
    def rdX(n):
        st_, s = divmod(n, 4); slot = slot_of(st_)
        base = (6 if slot < 2 else 10) + s
        a.ds_read_b128(vr(XF+4*(n % 2), 4), vr(base), mods=offm((slot % 2)*SLOT + (4096 if st_ < 10 else 0)))
        q.issue(('X', n))
    def mf(t, n):
        q.wait([('A', t, n), ('X', n)])
        a.v_mfma_f32_32x32x16_bf16(vr(ACC+16*t, 16), vr(AF+4*t, 4), vr(XF+4*(n % 2), 4), '0' if n == 0 else vr(ACC+16*t, 16))
    def cvtQ(t):
        for i in range(8): a.v_cvt_pk_bf16_f32(vr(QB+8*t+i), vr(ACC+16*t+2*i), vr(ACC+16*t+2*i+1))
    AF2 = 32
    VF2 = 16
    RTG = [24, 200, 204, 52]
    NK = 48
    VWT = [112, 128, 144, 208, 224]
    OAT = [64, 80, 96, 160, 176]
    def rdW(t, n2):
        s_, k = divmod(n2, 4); st_ = 10 + s_; slot = slot_of(st_)
        base = 14 if slot < 2 else 15
        off = (slot % 2)*SLOT + k*5120 + t*64
        for e in range(2):
            a.ds_read_b64_tr_b16(vr(AF2+4*t+2*e, 2), vr(base), mods=offm(off+e*1280))
            q.issue(('W', t, n2))
    def rdV(n2):
        s_, k = divmod(n2, 4); st_ = 10 + s_; slot = slot_of(st_)
        base = (6 if slot < 2 else 10) + k
        a.ds_read_b128(vr(VF2+4*(n2 % 2), 4), vr(base), mods=offm((slot % 2)*SLOT))
        q.issue(('V', n2))
    if OPT['KLATE']: early_issue()
    vq.wait([('S', 0)])
    st.stamp('pre')
    a.s_barrier()
    st.stamp('B0')
    rdX(0)
    for t in range(6): rdA(t, 0)
    def rdK(s12):
        a.ds_read_b128(vr(KF+4*s12, 4), vr(16 + (s12 & 1)), mods=offm((s12 >> 1)*64)); q.issue(('K', s12))
    for n in range(40):
        s = n % 4
        if s < 3:
            rdX(n+1)
            for t in range(6):
                mf(t, n); rdA(t, n+1)
                kn = n - 4*OPT['KS']
                if 0 <= kn < 2 and t < 5: rdK(5*kn + t)
        else:
            for t in range(3): mf(t, n)
            q.waitall()
            vq.wait([('S', n//4 + 1)])
            if n == 23:
                a.v_mov_b32('v28', 0)
                a.buffer_load_dword('v29', 'v28', 's[60:63]', 0, mods='offen sc1'); vq.issue(('N',))
            a.s_barrier()
            if n < 39:
                rdX(n+1); rdA(0, n+1); rdA(1, n+1)
                mf(3, n); rdA(2, n+1); mf(4, n); rdA(3, n+1); mf(5, n); rdA(4, n+1); rdA(5, n+1)
            else:
                rdV(0); rdW(0, 0); rdW(1, 0); rdW(2, 0)
                mf(3, n); rdW(3, 0); cvtQ(0); mf(4, n); rdW(4, 0); cvtQ(1); mf(5, n); cvtQ(2)
    st.stamp('qdone')
    vq.wait([('K',)])
    def mS(s12):
        a.v_mfma_f32_32x32x16_bf16(vr(SA, 16), vr(KF+4*s12, 4), vr(QB+4*s12, 4), '0' if s12 == 0 else vr(SA, 16))
    mS(0); mS(1); cvtQ(3); mS(2); mS(3); cvtQ(4); mS(4); mS(5); cvtQ(5)
    for s12 in range(6, 12): mS(s12)
    st.stamp('sdone')
    S = lambda j: vr(SA+j)
    m0_, m1_, a0_, a1_ = 'v52', 'v53', 'v54', 'v55'
    c = 192 ** -0.5 * 1.4426950408889634
    cbits = struct.unpack('<I', struct.pack('<f', c))[0]
    sm = []
    A = lambda f: sm.append(f)
    A(lambda: a.s_mov_b32('s46', hex(cbits)))
    A(lambda: a.v_max3_f32(m0_, S(0), S(1), S(2)))
    for j in range(3, 15, 2): A(lambda j=j: a.v_max3_f32(m0_, m0_, S(j), S(j+1)))
    A(lambda: a.v_max_f32(m0_, m0_, S(15)))
    A(lambda: a.v_mov_b32(m1_, m0_))
    A(lambda: a.v_permlane32_swap_b32(m0_, m1_))
    A(lambda: a.v_max_f32(m0_, m0_, m1_))
    A(lambda: a.v_mul_f32(m0_, 's46', m0_))
    for j in range(16): A(lambda j=j: a.v_fma_f32(S(j), S(j), 's46', '-' + m0_))
    for j in range(16): A(lambda j=j: a.v_exp_f32(S(j), S(j)))
    A(lambda: a.v_add_f32(a0_, S(0), S(1))); A(lambda: a.v_add_f32(a1_, S(2), S(3)))
    for j in range(4, 16, 2):
        A(lambda j=j: a.v_add_f32(a0_, a0_, S(j))); A(lambda j=j: a.v_add_f32(a1_, a1_, S(j+1)))
    A(lambda: a.v_add_f32(a0_, a0_, a1_))
    A(lambda: a.v_mov_b32(a1_, a0_))
    A(lambda: a.v_permlane32_swap_b32(a0_, a1_))
    A(lambda: a.v_add_f32(a0_, a0_, a1_))
    A(lambda: a.v_rcp_f32(a0_, a0_))
    for j in range(16): A(lambda j=j: a.v_mul_f32(S(j), S(j), a0_))
    PR = {0: 56, 1: 240, 2: 248, 3: 192}
    for i in range(8): A(lambda i=i: a.v_cvt_pk_bf16_f32(vr(PR[0]+i), S(2*i), S(2*i+1)))
    def sm_step(k):
        for _ in range(k):
            if sm: sm.pop(0)()
    TG = 32
    def publish():
        vq.wait([('N',)])
        a.v_readfirstlane_b32('s47', 'v29')
        a.s_cmp_lg_u32('s47', 0); a.s_cbranch_scc1('L_have_nonce')
        get_nonce(a, 'v29', 's47', 'cp')
        a.label('L_have_nonce')
        vq.q = []
        assert not sm
        for s_ in range(4):
            g_ = RTG[s_]
            a.v_mov_b32(vr(g_), vr(PR[0]+2*s_)); a.v_mov_b32(vr(g_+1), 's47')
            a.v_mov_b32(vr(g_+2), vr(PR[0]+2*s_+1)); a.v_mov_b32(vr(g_+3), 's47')
        a.s_lshl_b32('s3', 's41', 14); a.s_add_u32('s3', 's3', 's45')
        for s_ in range(4):
            a.buffer_store_dwordx4(vr(RTG[s_], 4), LN16, 's[32:35]', 's3', mods=M('offen', offm(s_*1024), 'sc1')); vq.issue(('PS',))
        st.stamp('pstored')
    def mw(t, n2):
        q.wait([('W', t, n2), ('V', n2)])
        a.v_mfma_f32_32x32x16_bf16(vr(VWT[t], 16), vr(VF2+4*(n2 % 2), 4), vr(AF2+4*t, 4), '0' if n2 % 12 == 0 else vr(VWT[t], 16))
        sm_step(OPT['SMK'])
    def ldP(hr):
        a.s_add_u32('s3', 's41', hr); a.s_and_b32('s3', 's3', 3); a.s_lshl_b32('s3', 's3', 14); a.s_add_u32('s53', 's3', 's45')
        for s_ in range(4):
            a.buffer_load_dwordx4(vr(RTG[s_], 4), LN16, 's[32:35]', 's53', mods=M('offen', offm(s_*1024), 'sc1')); vq.issue(('PL', hr))
    def chkP(hr):
        L = f'L_chkP{hr}'
        a.s_mov_b32('s50', 0)
        a.s_waitcnt('vmcnt(0)'); vq.q = []
        a.s_branch(L + '_c')
        a.label(L)
        for s_ in range(4):
            a.buffer_load_dwordx4(vr(RTG[s_], 4), LN16, 's[32:35]', 's53', mods=M('offen', offm(s_*1024), 'sc1'))
        a.s_waitcnt('vmcnt(0)')
        a.label(L + '_c')
        a.v_xor_b32('v28', 's47', vr(RTG[0]+1))
        for s_ in range(4):
            for o in (1, 3):
                if s_ == 0 and o == 1: continue
                a.v_xor_b32('v29', 's47', vr(RTG[s_]+o)); a.v_or_b32('v28', 'v28', 'v29')
        a.v_cmp_ne_u32('vcc', 0, 'v28')
        a.s_add_u32('s50', 's50', 1)
        a.s_cmp_gt_u32('s50', OPT['SPIN_MAX']); a.s_cbranch_scc1(L + '_d')
        a.s_cmp_lg_u64('vcc', 0); a.s_cbranch_scc1(L)
        a.label(L + '_d')
        for s_ in range(4):
            a.v_mov_b32(vr(PR[hr]+2*s_), vr(RTG[s_])); a.v_mov_b32(vr(PR[hr]+2*s_+1), vr(RTG[s_]+2))
    def cvt_store(dst, acc, sbase, f0):
        for i in range(8): a.v_cvt_pk_bf16_f32(vr(dst+i), vr(acc+2*i), vr(acc+2*i+1))
        for u in range(2):
            f = f0+u
            so = sbase; off = f*1024
            if off >= 4096:
                a.s_add_u32('s46', sbase, hex(off & ~4095)); so = 's46'; off &= 4095
            a.buffer_store_dwordx4(vr(dst+4*u, 4), LN16, 's[32:35]', so, mods=M('offen', offm(off), 'sc1'))
            vq.issue(('ST',))
    cnt = 0
    for n2 in range(NK):
        hr, k12 = divmod(n2, 12)
        s = n2 % 4
        last = (n2 == NK-1)
        if s < 3:
            rdV(n2+1)
            for t in range(5):
                mw(t, n2); rdW(t, n2+1); cnt += 1
        else:
            for t in range(2): mw(t, n2); cnt += 1
            if not last:
                q.waitall(); a.s_barrier()
                if (n2//4) in (1, 4, 7): st.stamp(f'W{n2//4+1}')
                rdV(n2+1); rdW(0, n2+1); rdW(1, n2+1)
                mw(2, n2); rdW(2, n2+1); mw(3, n2); rdW(3, n2+1); mw(4, n2); rdW(4, n2+1)
            else:
                mw(2, n2); mw(3, n2); mw(4, n2)
            cnt += 3
        if n2 == OPT['PUB_K']: publish()
        if k12 == OPT['PL_K'] and hr >= 1: ldP(hr)
        if k12 == OPT['PC_K'] and hr >= 1: chkP(hr)
        if k12 == 11:
            for t in range(5):
                for i in range(8): a.v_cvt_pk_bf16_f32(vr(VWT[t]+i), vr(VWT[t]+2*i), vr(VWT[t]+2*i+1))
                for u in range(2):
                    a.v_mfma_f32_32x32x16_bf16(vr(OAT[t], 16), vr(VWT[t]+4*u, 4), vr(PR[hr]+4*u, 4), '0' if (hr == 0 and u == 0) else vr(OAT[t], 16))
                if hr == 3 and t >= 1: cvt_store(VWT[t-1]+8, OAT[t-1], 's52', 2*(t-1))
    cvt_store(VWT[4]+8, OAT[4], 's52', 8)
    st.stamp('mdone')
    a.s_barrier()
    a.s_waitcnt('vmcnt(0)'); vq.q = []
    a.s_mov_b64('exec', 1)
    a.v_mov_b32('v5', 's47'); a.v_mov_b32('v6', 0)
    a.buffer_store_dword('v5', 'v6', 's[32:35]', 's43', mods='offen sc1')
    a.s_mov_b64('exec', -1)
    if OPT['INSTR']:
        st.stamp('flag')
        a.s_cmp_eq_u32('s39', 0); a.s_cbranch_scc0('L_c_end'); st.flush(1); a.label('L_c_end')
    a.s_endpgm()
    a.label('L_end')
    a.s_endpgm()

def build(path):
    hdr = open('cdna_kernels/%s.s.ref' % NAME).read().split('\n')
    head = [l for l in hdr if l.startswith(';') and '@launch' not in l and 'Override' not in l and 'grid=ceil' not in l]
    out = '\n'.join(head) + '\n'
    out += '; @launch grid=(256,1,1) block=(512,1,1) lds=163840\n'
    out += '.amdgcn_target "amdgcn-amd-amdhsa--gfx950"\n.text\n'
    a = Asm(); gen(a); out += a.finalize()
    out += f""".section .rodata,"a"
.p2align 6
.amdhsa_kernel {KN}
  .amdhsa_next_free_vgpr 256
  .amdhsa_next_free_sgpr 102
  .amdhsa_accum_offset 256
  .amdhsa_group_segment_fixed_size 0
  .amdhsa_kernarg_size 104
  .amdhsa_user_sgpr_count 2
  .amdhsa_user_sgpr_kernarg_segment_ptr 1
  .amdhsa_system_sgpr_workgroup_id_x 1
.end_amdhsa_kernel
"""
    open(path, 'w').write(out)

if __name__ == '__main__':
    path = sys.argv[1]
    for arg in sys.argv[2:]:
        k, v = arg.split('=')
        OPT[k] = int(v) if isinstance(OPT[k], int) else v
    build(path)
```

```python
import sys, struct
from asmlib import Asm, vr, sr

NAME = "concat_heads__gqa_block_cached__mha_block_cached__near_ridge"
KN = NAME + "_kernel"
OPT = dict(NT_KV='', NT_W='', NT_X='', NT_WO='', INSTR=0, ROT=1, SPIN_MAX=200000, FLAG_AT=12, POLL_AT=42,
           BUDGET=14, KVQ=3, KV_IT0=0, PRE=10, WO_PF=0, CSTAGES=2, KV_PRE=0, NOMF=0, NOKV=0, TLBW=0, WO_PF_IT=7, OLOCAL=0, DEFER=0)
O_OFF = 0
O_BYTES = 2*16*32*12288
P_OFF = 16 << 20
P_BYTES = 256*40960
FO_OFF = 28 << 20
FP_OFF = FO_OFF + 256*128
N_OFF = FP_OFF + 128*128
WS_SIZE = N_OFF + 128
SLOT = 40960
T_OFF = 64 << 20
KBASE = 114688
NONCE_C = 0x9E3779B9
WSLOT = [81920, 40960, 61440, 0, 20480, 102400, 122880, 143360, 81920, 40960, 61440, 0]

class Q:
    def __init__(self, a, name, mx): self.a = a; self.q = []; self.name = name; self.mx = mx
    def issue(self, tag): self.q.append(tag)
    def has(self, tag): return tag in self.q
    def wait(self, tags):
        idx = -1
        for i, t in enumerate(self.q):
            if t in tags: idx = i
        if idx < 0: return
        n = min(len(self.q) - 1 - idx, self.mx)
        self.a.s_waitcnt(f'{self.name}({n})')
        self.q = self.q[len(self.q) - n:] if n else []
    def waitall(self):
        self.a.s_waitcnt(f'{self.name}(0)'); self.q = []

class Stamps:
    def __init__(self, a, base_sgpr=64): self.a = a; self.n = 0; self.base = base_sgpr; self.names = []
    def stamp(self, name=''):
        if not OPT['INSTR']: return
        assert self.n < 16, self.names
        self.a.s_memrealtime(sr(self.base+2*self.n, 2)); self.n += 1; self.names.append(name)
    def flush(self, slot):
        if not OPT['INSTR']: return
        a = self.a
        print(f'stamps slot {slot}:', ' '.join(self.names), file=sys.stderr)
        a.s_waitcnt('lgkmcnt(0)')
        a.s_mov_b32('s96', 's6'); a.s_and_b32('s97', 's7', '0xffff'); a.s_mov_b32('s98', hex(T_OFF + (4 << 20))); a.s_mov_b32('s99', '0x20000')
        a.s_lshl_b32('s3', 's2', 9); a.s_add_u32('s3', 's3', hex(T_OFF + slot*128))
        a.v_mov_b32('v30', 0)
        a.s_mov_b64('exec', 1)
        for i in range(self.n):
            a.v_mov_b32('v31', sr(self.base+2*i))
            a.buffer_store_dword('v31', 'v30', 's[96:99]', 's3', mods=f'offen offset:{4*i}')
        a.s_mov_b64('exec', -1)

def srd(a, d, lo, hi, size):
    a.s_mov_b32(sr(d), sr(lo)); a.s_and_b32(sr(d+1), sr(hi), '0xffff'); a.s_mov_b32(sr(d+2), hex(size)); a.s_mov_b32(sr(d+3), '0x20000')
def M(*parts): return ' '.join(p for p in parts if p)
def offm(off): return f'offset:{off}' if off else ''

def get_nonce(a, vtmp, sdst, tag):
    L = f'nonce_{tag}'
    a.s_mov_b32('s51', 0)
    a.label(L)
    a.v_mov_b32(vtmp, 0)
    a.buffer_load_dword(vtmp, vtmp, 's[60:63]', 0, mods='offen sc1')
    a.s_waitcnt('vmcnt(0)')
    a.v_readfirstlane_b32(sdst, vtmp)
    a.s_add_u32('s51', 's51', 1)
    a.s_cmp_gt_u32('s51', OPT['SPIN_MAX']); a.s_cbranch_scc1(L + '_done')
    a.s_cmp_eq_u32(sdst, 0); a.s_cbranch_scc1(L)
    a.label(L + '_done')

def ring_setup(a, lw, vb):
    a.v_lshrrev_b32('v2', 3, 'v1')
    a.v_and_b32('v3', 7, 'v1')
    a.v_lshrrev_b32('v4', 1, 'v2'); a.v_and_b32('v5', 1, 'v4'); a.v_lshlrev_b32('v5', 2, 'v5'); a.v_xor_b32('v5', 'v3', 'v5')
    a.v_lshlrev_b32('v5', 4, 'v5')
    a.s_mul_i32('s3', 's37', 384)
    a.s_mul_i32('s4', lw, 16*12288)
    a.s_add_u32('s3', 's3', 's4')
    a.s_mov_b32('s5', 12288)
    a.v_mul_lo_u32('v6', 'v2', 's5')
    a.v_add_u32('v6', 'v6', 'v5')
    a.v_add_u32(vr(vb), 's3', 'v6')
    a.v_add_u32(vr(vb+1), hex(8*12288), vr(vb))
    a.s_lshl_b32('s3', 's38', 7); a.s_lshl_b32('s4', lw, 5); a.s_add_u32('s3', 's3', 's4'); a.s_mul_i32('s3', 's3', 1280)
    a.s_mov_b32('s5', 1280)
    a.v_mul_lo_u32('v6', 'v2', 's5'); a.v_add_u32('v6', 's3', 'v6')
    a.v_xor_b32('v5', 'v3', 'v4'); a.v_lshlrev_b32('v7', 4, 'v5')
    a.v_xor_b32('v5', 4, 'v5'); a.v_lshlrev_b32('v5', 4, 'v5')
    for i in range(4):
        a.v_add_u32(vr(vb+4+i), 'v6', 'v7' if i % 2 == 0 else 'v5')
        if i: a.v_add_u32(vr(vb+4+i), hex(i*8*1280), vr(vb+4+i))
    a.s_lshl_b32('s44', lw, 11)
    a.s_lshl_b32('s45', lw, 12)
    if OPT['ROT']:
        a.s_mul_i32('s43', 's38', 5); a.s_lshr_b32('s43', 's43', 1)
    else:
        a.s_mov_b32('s43', 0)
    a.s_mul_i32('s46', 's43', 64*12288)
    a.s_lshl_b32('s47', 's43', 7)

def ring_advance(a):
    a.s_add_u32('s43', 's43', 1); a.s_cmp_eq_u32('s43', 10); a.s_cselect_b32('s43', 0, 's43')
    a.s_mul_i32('s46', 's43', 64*12288); a.s_lshl_b32('s47', 's43', 7)

def ring_items(a, vq, vb):
    ring = []
    for s in range(10):
        slot = (s % 4) * SLOT
        items = []
        for rg in range(2):
            for t2 in range(3):
                def f(s=s, slot=slot, rg=rg, t2=t2):
                    a.s_add_u32('m0', 's44', hex(slot + t2*8192 + rg*1024 - t2*128))
                    a.buffer_load_dwordx4(vr(vb+rg), 's[20:23]', 's46', mods=M('offen', offm(t2*128), OPT['NT_W'], 'lds')); vq.issue(('Q', s))
                items.append(f)
        for i in range(4):
            def f(s=s, slot=slot, i=i):
                a.s_add_u32('m0', 's45', hex(slot + 24576 + i*1024))
                a.buffer_load_dwordx4(vr(vb+4+i), 's[16:19]', 's47', mods=M('offen', OPT['NT_X'], 'lds')); vq.issue(('Q', s))
                if i == 3: ring_advance(a)
            items.append(f)
        ring += [(s, f) for f in items]
    return ring

def gen(a):
    a.raw('.p2align 8'); a.raw(f'.globl {KN}'); a.raw(f'.type {KN},@function'); a.label(KN)
    a.s_cmp_ge_u32('s2', 256); a.s_cbranch_scc1('L_end')
    a.s_and_b32('s3', 's2', 7)
    a.s_lshr_b32('s36', 's3', 2)
    a.s_mul_i32('s4', 's36', 40)
    a.s_load_dwordx8('s[8:15]', 's[0:1]', 's4')
    a.s_add_u32('s4', 's4', 32)
    a.s_load_dwordx2('s[48:49]', 's[0:1]', 's4')
    a.s_load_dwordx4('s[56:59]', 's[0:1]', 80)
    a.s_load_dwordx2('s[6:7]', 's[0:1]', 96)
    a.s_and_b32('s3', 's3', 3)
    a.s_lshl_b32('s3', 's3', 3)
    a.s_lshr_b32('s4', 's2', 3)
    a.s_and_b32('s5', 's4', 7)
    a.s_or_b32('s37', 's3', 's5')
    a.s_lshr_b32('s38', 's4', 3)
    a.v_lshrrev_b32('v1', 6, 'v0')
    a.v_readfirstlane_b32('s39', 'v1')
    a.v_and_b32('v1', 63, 'v0')
    a.s_lshr_b32('s40', 's37', 2)
    a.s_and_b32('s41', 's37', 3)
    a.s_cmp_lt_u32('s39', 4); a.s_cbranch_scc1('L_compute')

    a.s_sub_u32('s42', 's39', 4)
    st = Stamps(a); st.stamp('start')
    ring_setup(a, 's42', 8)
    a.s_waitcnt('lgkmcnt(0)')
    srd(a, 20, 14, 15, 640*6144*2)
    srd(a, 16, 8, 9, 512*640*2)
    vq = Q(a, 'vmcnt', 63)
    lq = Q(a, 'lgkmcnt', 15)
    ring = ring_items(a, vq, 8)
    CS = OPT['CSTAGES']
    rpos = [0]
    def issue_ring(n, maxstage):
        k = 0
        while k < n and rpos[0] < len(ring) and ring[rpos[0]][0] <= maxstage:
            ring[rpos[0]][1](); rpos[0] += 1; k += 1
        return k
    issue_ring(10, 0)
    for k in range(CS): ring_advance(a)
    rpos[0] += 10*CS
    srd(a, 24, 10, 11, 16*32*12288)
    srd(a, 28, 12, 13, 16*32*12288)
    srd(a, 52, 48, 49, 6144*640*2)
    issue_ring(OPT['PRE'] - 10, 3)
    srd(a, 32, 6, 7, WS_SIZE)
    srd(a, 60, 58, 59, 256)
    srd(a, 56, 56, 57, 16*32*1280*2)
    if OPT['TLBW']:
        a.v_lshlrev_b32('v2', 20, 'v1')
        a.buffer_load_dword('v200', 'v2', 's[20:23]', 0, mods='offen');
        a.buffer_load_dword('v201', 'v2', 's[52:55]', 0, mods='offen')
        a.buffer_load_dword('v202', 'v2', 's[32:35]', 0, mods='offen')
        a.buffer_load_dword('v203', 'v2', 's[24:27]', 0, mods='offen')
        a.buffer_load_dword('v204', 'v2', 's[28:31]', 0, mods='offen')
        a.buffer_load_dword('v205', 'v2', 's[56:59]', 0, mods='offen')
        for k in range(6): vq.issue(('T',))
    KVO = 21; KS = 64; VS = 112
    a.s_mov_b32('s5', 2731)
    for b3 in range(3):
        a.v_add_u32('v2', 64*b3, 'v1')
        a.v_mul_lo_u32('v3', 'v2', 's5'); a.v_lshrrev_b32('v3', 17, 'v3')
        a.v_xor_b32('v4', 'v2', 'v3'); a.v_lshlrev_b32(vr(KVO+b3), 4, 'v4')
        a.v_xor_b32('v4', 4, 'v4'); a.v_lshlrev_b32(vr(KVO+3+b3), 4, 'v4')
        a.v_and_b32('v3', 1, 'v3'); a.v_lshlrev_b32('v3', 2, 'v3'); a.v_xor_b32('v4', 'v2', 'v3'); a.v_lshlrev_b32(vr(KVO+6+b3), 4, 'v4')
    a.s_lshl_b32('s3', 's38', 2); a.s_add_u32('s3', 's3', 's42'); a.s_lshl_b32('s3', 's3', 5); a.s_add_u32('s3', 's3', 's37')
    a.s_mul_i32('s48', 's3', 12288); a.s_add_u32('s49', 's48', 6144)
    kvn = [0]
    def kvload():
        idx = kvn[0]; kvn[0] += 1
        if OPT['NOKV']: return
        isv, i = divmod(idx, 12)
        aa, b3 = divmod(i, 3)
        vo = (KVO+6+b3) if isv else ((KVO if aa % 2 == 0 else KVO+3) + b3)
        a.buffer_load_dwordx4(vr((VS if isv else KS)+4*i, 4), vr(vo), 's[28:31]' if isv else 's[24:27]', sr(48 + (aa >> 1)), mods=M('offen', offm((aa & 1)*3072), OPT['NT_KV']))
        vq.issue(('KV', isv))
    a.v_lshlrev_b32('v20', 4, 'v1')
    a.s_mul_i32('s3', 's42', 12288); a.s_add_u32('s4', 's3', KBASE); a.v_add_u32('v30', 's4', 'v20')
    a.s_cmp_eq_u32('s42', 3); a.s_cselect_b32('s4', 102400, 's3'); a.v_add_u32('v31', 's4', 'v20')
    WV = 32
    a.s_mov_b32('s5', 3277)
    a.s_mul_i32('s3', 's40', 768*1280); a.s_mul_i32('s4', 's41', 320); a.s_add_u32('s3', 's3', 's4')
    a.s_mul_i32('s4', 's42', 16*1280); a.s_add_u32('s3', 's3', 's4')
    a.s_mov_b32('s4', 1280)
    for b in range(5):
        a.v_add_u32('v2', 64*b, 'v1')
        a.v_mul_lo_u32('v3', 'v2', 's5'); a.v_lshrrev_b32('v3', 16, 'v3')
        a.v_mul_u32_u24('v4', 20, 'v3'); a.v_sub_u32('v4', 'v2', 'v4')
        a.v_mul_lo_u32('v3', 'v3', 's4'); a.v_lshl_add_u32('v3', 'v4', 4, 'v3')
        a.v_add_u32(vr(WV+b), 's3', 'v3')
    a.s_mul_i32('s50', 's42', 5120)
    a.s_mul_i32('s51', 's41', 3)
    def issue_wo(sg):
        a.s_mul_i32('s3', 's51', 64*1280)
        for b in range(5):
            a.s_add_u32('m0', 's50', hex(WSLOT[sg] + b*1024))
            a.buffer_load_dwordx4(vr(WV+b), 's[52:55]', 's3', mods=M('offen', OPT['NT_WO'], 'lds')); vq.issue(('W', sg))
        a.s_add_u32('s51', 's51', 1); a.s_cmp_eq_u32('s51', 12); a.s_cselect_b32('s51', 0, 's51')
    def prefetch_wo(k, base):
        if k < 2:
            a.s_add_u32('s3', 's51', 's38'); a.s_add_u32('s3', 's3', 3 + 4*k - base + 12)
        else:
            a.s_add_u32('s3', 's51', 11 - base + 12)
        for _ in range(3):
            a.s_cmp_ge_u32('s3', 12); a.s_cselect_b32('s4', 12, 0); a.s_sub_u32('s3', 's3', 's4')
        a.s_mul_i32('s3', 's3', 64*1280)
        for b in range(5):
            a.buffer_load_dwordx4(vr(160+4*(5*k+b), 4), vr(WV+b), 's[52:55]', 's3', mods=M('offen', OPT['NT_WO'])); vq.issue(('PF',))
    for k in range(OPT['KV_PRE']): kvload()
    st.stamp('pre')
    vq.wait([('Q', 0)]); st.stamp('q0'); a.s_barrier()
    for i in range(0, 9):
        if i in (2, 4, 6, 8): st.stamp(f'B{i}')
        budget = OPT['BUDGET']
        n = issue_ring(budget, min(9, i+2)); budget -= n
        if i >= OPT['KV_IT0']:
            k = 0
            while k < OPT['KVQ'] and kvn[0] < 24 and budget > 0: kvload(); k += 1; budget -= 1
        n = issue_ring(max(budget, 0), min(9, i+3)); budget -= n
        while budget > 0 and kvn[0] < 24 and i >= OPT['KV_IT0'] and rpos[0] == len(ring): kvload(); budget -= 1
        if i == 7:
            while kvn[0] < 24: kvload()
        if OPT['WO_PF'] == 1 and i == OPT['WO_PF_IT']: prefetch_wo(0, 0); prefetch_wo(1, 0); prefetch_wo(2, 0)
        if OPT['WO_PF'] == 2 and OPT['WO_PF_IT'] <= i < OPT['WO_PF_IT'] + 3: prefetch_wo(i - OPT['WO_PF_IT'], 0)
        if i == 8:
            issue_wo(0)
            vq.wait([('KV', 0)])
            for k in range(12):
                a.ds_write_b128('v30', vr(KS+4*k, 4), mods=offm(k*1024))
            a.s_waitcnt('lgkmcnt(0)')
        vq.wait([('Q', i+1)])
        a.s_barrier()
    assert rpos[0] == len(ring) and kvn[0] == 24
    st.stamp('B9')
    vq.wait([('KV', 1)])
    for k in range(12):
        a.ds_write_b128('v31', vr(VS+4*k, 4), mods=offm(k*1024))
    a.s_waitcnt('lgkmcnt(0)')
    a.s_barrier()
    st.stamp('B10')
    issue_wo(1); issue_wo(2)
    vq.wait([('W', 0)])
    a.s_barrier()
    st.stamp('B11')
    issue_wo(3); issue_wo(4)
    if not OPT['DEFER']: issue_wo(5); issue_wo(6); issue_wo(7)
    vq.wait([('W', 2)])
    a.s_barrier()
    vq.wait([('W', 4)])
    a.s_barrier()
    st.stamp('C1')
    if OPT['DEFER']: issue_wo(5); issue_wo(6); issue_wo(7)
    issue_wo(8); issue_wo(9); issue_wo(10)
    vq.wait([('W', 7)])
    a.s_barrier()
    issue_wo(11)
    vq.wait([('W', 8)])
    a.s_barrier()
    vq.waitall()
    a.s_barrier()
    get_nonce(a, 'v2', 's43', 'ld')
    a.s_lshl_b32('s3', 's36', 2); a.s_add_u32('s3', 's3', 's38'); a.s_lshl_b32('s3', 's3', 2); a.s_add_u32('s3', 's3', 's41')
    a.s_lshr_b32('s4', 's40', 1)
    a.s_lshl_b32('s5', 's3', 2); a.s_add_u32('s5', 's5', 's4'); a.s_lshl_b32('s5', 's5', 7); a.s_add_u32('s44', 's5', hex(FP_OFF))
    a.s_and_b32('s5', 's40', 1); a.s_mul_i32('s5', 's5', 5)
    a.s_add_u32('s45', 's5', 's42')
    a.s_mul_i32('s46', 's3', 8*40960); a.s_mul_i32('s47', 's4', 10240); a.s_add_u32('s46', 's46', 's47'); a.s_add_u32('s46', 's46', hex(P_OFF))
    a.s_lshl_b32('s47', 's38', 2); a.s_add_u32('s47', 's47', 's4'); a.s_mul_i32('s47', 's47', 32*2560)
    a.s_mul_i32('s3', 's36', 1280); a.s_add_u32('s47', 's47', 's3'); a.s_mul_i32('s3', 's41', 320); a.s_add_u32('s47', 's47', 's3')
    a.v_and_b32('v2', 31, 'v1'); a.v_mul_u32_u24('v2', 2560, 'v2'); a.v_lshrrev_b32('v3', 5, 'v1'); a.v_lshl_add_u32('v2', 'v3', 4, 'v2')
    a.v_and_b32('v4', 7, 'v1'); a.v_lshlrev_b32('v4', 2, 'v4')
    a.s_barrier()
    st.stamp('D')
    a.s_mov_b32('s50', 0)
    a.label('L_pollP')
    a.buffer_load_dword('v5', 'v4', 's[32:35]', 's44', mods='offen sc1')
    a.s_waitcnt('vmcnt(0)')
    a.v_cmp_ne_u32('vcc', 's43', 'v5')
    a.s_add_u32('s50', 's50', 1)
    a.s_cmp_gt_u32('s50', OPT['SPIN_MAX']); a.s_cbranch_scc1('L_pollP_done')
    a.s_cmp_lg_u64('vcc', 0); a.s_cbranch_scc1('L_pollP')
    a.label('L_pollP_done')
    st.stamp('polled')
    def reduce_load(stu, base):
        a.s_lshl_b32('s3', stu, 10); a.s_add_u32('s3', 's3', 's46')
        for kk in range(8):
            a.buffer_load_dwordx4(vr(base+4*kk, 4), 'v20', 's[32:35]', 's3', mods='offen sc1')
            if kk < 7: a.s_add_u32('s3', 's3', 40960)
    def reduce_sum(stu, base, first_wait, dst):
        for kk in range(8):
            a.s_waitcnt(f'vmcnt({first_wait-kk})')
            for i in range(4):
                src = vr(base+4*kk+i)
                if kk == 0:
                    a.v_lshlrev_b32(vr(8+2*i), 16, src); a.v_and_b32(vr(9+2*i), '0xffff0000', src)
                else:
                    a.v_lshlrev_b32('v16', 16, src); a.v_and_b32('v17', '0xffff0000', src)
                    a.v_add_f32(vr(8+2*i), vr(8+2*i), 'v16'); a.v_add_f32(vr(9+2*i), vr(9+2*i), 'v17')
        for i in range(4): a.v_cvt_pk_bf16_f32(vr(dst+i), vr(8+2*i), vr(9+2*i))
        a.s_lshl_b32('s3', stu, 5); a.s_add_u32('s3', 's3', 's47')
        a.buffer_store_dwordx4(vr(dst, 4), 'v2', 's[56:59]', 's3', mods='offen')
    a.s_cmp_eq_u32('s42', 0); a.s_cbranch_scc1('L_red2')
    reduce_load('s45', 64); reduce_sum('s45', 64, 7, 24)
    a.s_branch('L_red_done')
    a.label('L_red2')
    a.s_add_u32('s50', 's45', 4)
    reduce_load('s45', 64); reduce_load('s50', 96)
    reduce_sum('s45', 64, 15, 24)
    reduce_sum('s50', 96, 8, 28)
    a.label('L_red_done')
    if OPT['INSTR']:
        st.stamp('red'); a.s_waitcnt('vmcnt(0)'); st.stamp('end')
        a.s_cmp_eq_u32('s42', 0); a.s_cbranch_scc0('L_ld_end'); st.flush(0); a.label('L_ld_end')
    a.s_endpgm()

    a.label('L_compute')
    AF = 32; XF = 56; ACC = 64; SA = 32; PP = 56
    QB = 208; KF = 160; VF = 160; OP = 208
    st = Stamps(a)
    vq = Q(a, 'vmcnt', 63)
    a.s_waitcnt('lgkmcnt(0)')
    srd(a, 32, 6, 7, WS_SIZE)
    srd(a, 60, 58, 59, 256)
    a.v_mov_b32('v30', hex(N_OFF))
    a.s_or_b32('s50', 's2', 's39'); a.s_cmp_eq_u32('s50', 0); a.s_cbranch_scc0('L_no_nonce0')
    a.buffer_load_dword('v31', 'v30', 's[32:35]', 0, mods='offen sc1')
    a.label('L_no_nonce0')
    if OPT['CSTAGES']:
        ring_setup(a, 's39', 160)
        srd(a, 20, 14, 15, 640*6144*2)
        srd(a, 16, 8, 9, 512*640*2)
        cring = ring_items(a, vq, 160)
        ring_advance(a)
        for (s_, f_) in cring:
            if 1 <= s_ <= OPT['CSTAGES']: f_()
    a.s_cmp_eq_u32('s50', 0); a.s_cbranch_scc0('L_no_nonce')
    a.s_waitcnt(f"vmcnt({10*OPT['CSTAGES']})")
    a.v_add_u32('v31', hex(NONCE_C), 'v31')
    a.v_cmp_eq_u32('vcc', 0, 'v31')
    a.v_mov_b32('v4', hex(NONCE_C))
    a.v_cndmask_b32('v31', 'v31', 'v4', 'vcc')
    a.s_mov_b64('exec', 1)
    a.buffer_store_dword('v31', 'v30', 's[32:35]', 0, mods='offen sc1')
    a.v_mov_b32('v4', 0)
    a.buffer_store_dword('v31', 'v4', 's[60:63]', 0, mods='offen sc1')
    a.s_mov_b64('exec', -1)
    a.label('L_no_nonce')
    T = 32
    hf, G2, r_, d48, t1, t2_, t3, t4 = [vr(T+i) for i in range(8)]
    a.v_lshrrev_b32(hf, 5, 'v1'); a.v_bfe_u32(G2, 'v1', 4, 1); a.v_bfe_u32(r_, 'v1', 2, 2)
    a.v_and_b32(d48, 1, 'v1'); a.v_lshlrev_b32(d48, 1, d48); a.v_bfe_u32(t1, 'v1', 1, 1); a.v_or_b32(d48, d48, t1)
    a.v_lshl_add_u32(d48, G2, 2, d48); a.v_lshlrev_b32(d48, 3, d48)
    a.v_lshrrev_b32(t1, 1, r_); a.v_lshlrev_b32(t1, 6, t1); a.v_add_u32(t1, d48, t1)
    a.v_lshl_add_u32(t2_, hf, 3, r_)
    a.v_lshlrev_b32(t3, 7, t2_); a.v_add_u32('v2', t3, t1)
    a.v_xor_b32('v3', 64, 'v2')
    a.v_add_u32('v4', hex(2*SLOT), 'v2'); a.v_add_u32('v5', hex(2*SLOT), 'v3')
    a.v_mul_u32_u24('v30', 320, t2_); a.v_add_u32('v30', 'v30', d48)
    a.v_and_b32(t3, 31, 'v1'); a.v_bfe_u32(t4, 'v1', 1, 3); a.v_xor_b32(t4, t4, hf); a.v_lshlrev_b32(t4, 4, t4)
    a.s_lshl_b32('s3', 's39', 12); a.s_add_u32('s3', 's3', 24576)
    a.v_lshl_add_u32(G2, t3, 7, t4); a.v_add_u32('v6', 's3', G2)
    for s in range(1, 4): a.v_xor_b32(vr(6+s), 32*s, 'v6')
    for s in range(4): a.v_add_u32(vr(10+s), hex(2*SLOT), vr(6+s))
    a.s_mul_i32('s3', 's39', 12288); a.s_add_u32('s4', 's3', KBASE)
    a.s_mov_b32('s5', 384)
    a.v_mul_lo_u32(G2, t3, 's5'); a.v_add_u32(G2, G2, t4); a.v_add_u32('v14', 's4', G2)
    for s in range(1, 4): a.v_xor_b32(vr(14+s), 32*s, 'v14')
    a.s_cmp_eq_u32('s39', 3); a.s_cselect_b32('s4', 102400, 's3')
    a.v_lshl_add_u32(G2, hf, 2, r_); a.v_mul_lo_u32(G2, G2, 's5'); a.v_add_u32(G2, G2, t1); a.v_add_u32('v18', 's4', G2)
    a.v_xor_b32('v19', 64, 'v18')
    a.v_lshlrev_b32('v20', 4, 'v1')
    a.s_lshl_b32('s3', 's36', 4); a.s_lshl_b32('s4', 's38', 2); a.s_add_u32('s3', 's3', 's4'); a.s_add_u32('s3', 's3', 's39'); a.s_lshl_b32('s3', 's3', 5)
    a.s_add_u32('s4', 's3', 's37'); a.s_mul_i32('s44', 's4', 12288)
    a.s_lshl_b32('s4', 's40', 2); a.s_add_u32('s3', 's3', 's4'); a.s_mul_i32('s45', 's3', 12288)
    a.s_lshl_b32('s3', 's36', 2); a.s_add_u32('s3', 's3', 's38'); a.s_lshl_b32('s4', 's3', 3); a.s_add_u32('s4', 's4', 's40'); a.s_lshl_b32('s4', 's4', 2); a.s_add_u32('s4', 's4', 's39')
    a.s_lshl_b32('s4', 's4', 7); a.s_add_u32('s48', 's4', hex(FO_OFF))
    a.s_lshl_b32('s4', 's41', 2); a.s_add_u32('s49', 's48', 's4')
    a.s_lshl_b32('s3', 's3', 2); a.s_add_u32('s3', 's3', 's41')
    a.s_lshl_b32('s4', 's3', 3); a.s_add_u32('s4', 's4', 's40'); a.s_mul_i32('s4', 's4', 40960); a.s_mul_i32('s5', 's39', 10240); a.s_add_u32('s4', 's4', 's5'); a.s_add_u32('s52', 's4', hex(P_OFF))
    a.s_lshl_b32('s4', 's3', 2); a.s_add_u32('s4', 's4', 's39'); a.s_lshl_b32('s4', 's4', 7); a.s_lshl_b32('s5', 's40', 2); a.s_add_u32('s4', 's4', 's5'); a.s_add_u32('s43', 's4', hex(FP_OFF))

    q = Q(a, 'lgkmcnt', 15)
    def rdA(t, n):
        if OPT['NOMF'] > 1 and n > 0: return
        st_, s = divmod(n, 4); slot = st_ % 4
        base = (2 if slot < 2 else 4) + (t % 2)
        off = (slot % 2) * SLOT + (t//2)*8192 + s*2048
        for e in range(2):
            a.ds_read_b64_tr_b16(vr(AF+4*t+2*e, 2), vr(base), mods=offm(off+e*512))
            q.issue(('A', t, n))
    def rdX(n):
        st_, s = divmod(n, 4); slot = st_ % 4
        base = (6 if slot < 2 else 10) + s
        a.ds_read_b128(vr(XF+4*(n % 2), 4), vr(base), mods=offm((slot % 2)*SLOT))
        q.issue(('X', n))
    def mf(t, n):
        if OPT['NOMF'] and n > 0: return
        q.wait([('A', t, n), ('X', n)])
        a.v_mfma_f32_32x32x16_bf16(vr(ACC+16*t, 16), vr(AF+4*t, 4), vr(XF+4*(n % 2), 4), '0' if n == 0 else vr(ACC+16*t, 16))
    def rdK(s12):
        aa, sp = divmod(s12, 4)
        a.ds_read_b128(vr(KF+4*s12, 4), vr(14+sp), mods=offm(aa*128)); q.issue(('K', s12))
    def cvtQ(t):
        for i in range(8): a.v_cvt_pk_bf16_f32(vr(QB+8*t+i), vr(ACC+16*t+2*i), vr(ACC+16*t+2*i+1))
    def rdV(t, u):
        for e in range(2):
            a.ds_read_b64_tr_b16(vr(VF+8*t+4*u+2*e, 2), vr(18+(t % 2)), mods=offm(u*6144+e*3072+(t//2)*128))
            q.issue(('V', t, u))
    st.stamp('pre')
    a.s_barrier()
    st.stamp('B0')
    rdX(0)
    for t in range(6): rdA(t, 0)
    for n in range(40):
        s = n % 4
        extra = []
        if n in (36, 37, 38): extra = [(lambda i=i: rdK(i)) for i in range((n-36)*4, (n-36)*4+4)]
        if s < 3:
            rdX(n+1)
            for t in range(6):
                mf(t, n); rdA(t, n+1)
                if t < len(extra): extra[t]()
        else:
            for t in range(3): mf(t, n)
            q.waitall()
            vq.wait([('Q', n//4 + 1)])
            a.s_barrier()
            if n < 39:
                rdX(n+1); rdA(0, n+1); rdA(1, n+1)
                mf(3, n); rdA(2, n+1); mf(4, n); rdA(3, n+1); mf(5, n); rdA(4, n+1); rdA(5, n+1)
            else:
                a.v_mov_b32('v2', 0)
                a.buffer_load_dword('v5', 'v2', 's[60:63]', 0, mods='offen sc1')
                mf(3, n); cvtQ(0); mf(4, n); cvtQ(1); mf(5, n); cvtQ(2)
    st.stamp('qdone')
    def mS(s12):
        a.v_mfma_f32_32x32x16_bf16(vr(SA, 16), vr(KF+4*s12, 4), vr(QB+4*s12, 4), '0' if s12 == 0 else vr(SA, 16))
    order = [(t, u) for t in range(6) for u in range(2)]
    mS(0); mS(1); cvtQ(3); mS(2); mS(3); cvtQ(4); mS(4); mS(5); cvtQ(5)
    for s12 in range(6, 12): mS(s12)
    for k in range(7): rdV(*order[k])
    S = lambda j: vr(SA+j)
    m0_, m1_ = 'v48', 'v49'
    a.v_max3_f32(m0_, S(0), S(1), S(2))
    for j in range(3, 15, 2): a.v_max3_f32(m0_, m0_, S(j), S(j+1))
    a.v_max_f32(m0_, m0_, S(15))
    a.v_mov_b32(m1_, m0_)
    a.v_permlane32_swap_b32(m0_, m1_)
    a.v_max_f32(m0_, m0_, m1_)
    c = 192 ** -0.5 * 1.4426950408889634
    cbits = struct.unpack('<I', struct.pack('<f', c))[0]
    a.s_mov_b32('s46', hex(cbits))
    a.v_mul_f32(m0_, 's46', m0_)
    for j in range(16): a.v_fma_f32(S(j), S(j), 's46', '-' + m0_)
    for j in range(16): a.v_exp_f32(S(j), S(j))
    for k in range(7, 12): rdV(*order[k])
    a.v_add_f32('v50', S(0), S(1)); a.v_add_f32('v51', S(2), S(3))
    for j in range(4, 16, 2):
        a.v_add_f32('v50', 'v50', S(j)); a.v_add_f32('v51', 'v51', S(j+1))
    a.v_add_f32('v50', 'v50', 'v51')
    a.v_mov_b32('v51', 'v50')
    a.v_permlane32_swap_b32('v50', 'v51')
    a.v_add_f32('v50', 'v50', 'v51')
    a.v_rcp_f32('v50', 'v50')
    for j in range(16): a.v_mul_f32(S(j), S(j), 'v50')
    for i in range(8): a.v_cvt_pk_bf16_f32(vr(PP+i), S(2*i), S(2*i+1))
    st.stamp('smax')
    a.s_waitcnt('vmcnt(0)'); vq.q = []
    a.v_readfirstlane_b32('s47', 'v5')
    a.s_cmp_lg_u32('s47', 0); a.s_cbranch_scc1('L_have_nonce')
    get_nonce(a, 'v5', 's47', 'cp')
    a.label('L_have_nonce')
    a.v_mov_b32('v2', 'v30'); a.v_add_u32('v3', hex(61440), 'v30'); a.v_add_u32('v4', hex(122880), 'v30')
    ACC2 = 64
    seq = [(t, n2) for n2 in range(36) for t in range(5)] + [(t, n2) for t in range(5) for n2 in range(36, 48)]
    pos = {p: i for i, p in enumerate(seq)}
    def afbuf(t, n2): return pos[(t, n2)] % 5
    def rdW(t, n2):
        sg, s = divmod(n2, 4)
        ad = WSLOT[sg]; b = ad // 61440; o = ad - b*61440
        off = o + s*5120 + t*64
        for e in range(2):
            a.ds_read_b64_tr_b16(vr(AF+4*afbuf(t, n2)+2*e, 2), vr(2+b), mods=offm(off+e*1280))
            q.issue(('W', t, n2))
    R2 = [144, 148, 152, 156, 52, 8, 12, 16, 24, 28, 56, 60]
    def bfrag(n2):
        hr, s12 = divmod(n2, 12)
        if hr == 0 or hr == 3: return OP + 4*s12
        if hr == 1: return 160 + 4*s12
        return R2[s12]
    def pv(t, u):
        q.wait([('V', t, u)])
        a.v_mfma_f32_32x32x16_bf16(vr(ACC+16*t, 16), vr(VF+8*t+4*u, 4), vr(PP+4*u, 4), '0' if u == 0 else vr(ACC+16*t, 16))
    def cvt_store(dst, acc, sbase, f0, pol='sc1'):
        for i in range(8): a.v_cvt_pk_bf16_f32(vr(dst+i), vr(acc+2*i), vr(acc+2*i+1))
        for u in range(2):
            f = f0+u
            so = sbase; off = f*1024
            if off >= 4096:
                a.s_add_u32('s46', sbase, hex(off & ~4095)); so = 's46'; off &= 4095
            a.buffer_store_dwordx4(vr(dst+4*u, 4), 'v20', 's[32:35]', so, mods=M('offen', offm(off), pol))
            vq.issue(('ST',))
    def cso(t): cvt_store(OP+8*t, ACC+16*t, 's44', 2*t, '' if OPT['OLOCAL'] else 'sc1')
    pv(0, 0); pv(0, 1); pv(1, 0); pv(1, 1)
    cso(0)
    pv(2, 0); pv(2, 1); cso(1)
    pv(3, 0); pv(3, 1); cso(2)
    pv(4, 0); pv(4, 1); cso(3)
    pv(5, 0); pv(5, 1); cso(4)
    cso(5)
    st.stamp('ostored')
    q.waitall(); a.s_barrier()
    for i in range(5): rdW(*seq[i])
    def set_flag(saddr, pol='sc1'):
        a.s_waitcnt('vmcnt(0)'); vq.q = []
        a.s_mov_b64('exec', 1)
        a.v_mov_b32('v5', 's47'); a.v_mov_b32('v6', 0)
        a.buffer_store_dword('v5', 'v6', 's[32:35]', saddr, mods=M('offen', pol))
        a.s_mov_b64('exec', -1)
        vq.issue(('F',))
    BAR = {pos[(0, 4)]: 'B11b', pos[(0, 12)]: 'C1', pos[(0, 20)]: 'C2', pos[(0, 32)]: 'C3a', pos[(0, 36)]: 'C3b'}
    nxt = 5
    done_bar = set()
    pend = {}
    def ldR(hr, s12):
        if s12 % 4 == 0:
            a.s_add_u32('s3', 's41', hr); a.s_and_b32('s3', 's3', 3); a.s_mul_i32('s3', 's3', 12288); a.s_add_u32('s3', 's3', 's45')
            if s12: a.s_add_u32('s3', 's3', s12*1024)
            a.s_mov_b32(f's{53+hr}', 's3')
        a.buffer_load_dwordx4(vr(bfrag(12*hr+s12), 4), 'v20', 's[32:35]', f's{53+hr}', mods=M('offen', offm((s12 % 4)*1024), 'sc1'))
        vq.issue(('R', 12*hr+s12))
    rl = [(hr, s12) for hr in range(1, 4) for s12 in range(12)]
    rli = 0
    for i, (t, n2) in enumerate(seq):
        if i == pos[(0, 12)]:
            a.s_mov_b32('s50', 0)
            a.s_waitcnt('vmcnt(0)'); vq.q = []
            a.v_cmp_ne_u32('vcc', 's47', 'v6')
            a.s_cmp_lg_u64('vcc', 0); a.s_cbranch_scc0('L_pollO_done')
            a.label('L_pollO')
            a.buffer_load_dword('v6', 'v5', 's[32:35]', 's48', mods='offen sc1')
            a.s_waitcnt('vmcnt(0)')
            a.v_cmp_ne_u32('vcc', 's47', 'v6')
            a.s_add_u32('s50', 's50', 1)
            a.s_cmp_gt_u32('s50', OPT['SPIN_MAX']); a.s_cbranch_scc1('L_pollO_done')
            a.s_cmp_lg_u64('vcc', 0); a.s_cbranch_scc1('L_pollO')
            a.label('L_pollO_done')
            st.stamp('polled')
            for k in range(12): ldR(*rl[rli]); rli += 1
            q.waitall(); a.s_barrier(); done_bar.add('C1'); st.stamp('C1')
            while nxt - 5 < i: rdW(*seq[nxt]); nxt += 1
        q.wait([('W', t, n2)])
        if vq.has(('R', n2)): vq.wait([('R', n2)])
        a.v_mfma_f32_32x32x16_bf16(vr(ACC2+16*t, 16), vr(AF+4*afbuf(t, n2), 4), vr(bfrag(n2), 4), '0' if n2 == 0 else vr(ACC2+16*t, 16))
        if i == pos[(0, 12)]: st.stamp('r1first')
        if n2 == 47 and t < 4: pend[i+3] = t
        while nxt < len(seq) and nxt - 5 <= i:
            if nxt in BAR and BAR[nxt] not in done_bar:
                if i < nxt - 3 or BAR[nxt] == 'C1': break
                q.waitall(); a.s_barrier(); done_bar.add(BAR[nxt])
                if BAR[nxt] in ('C1', 'C2', 'C3b'): st.stamp(BAR[nxt])
            rdW(*seq[nxt]); nxt += 1
        if i >= pos[(0, 12)] and rli < len(rl) and (i % 2 == 0):
            hr, s12 = rl[rli]
            ldR(hr, s12); rli += 1
        if i == OPT['FLAG_AT']: set_flag('s49', '' if OPT['OLOCAL'] else 'sc1')
        if i == OPT['POLL_AT']:
            a.v_and_b32('v5', 3, 'v1'); a.v_lshlrev_b32('v5', 2, 'v5')
            a.buffer_load_dword('v6', 'v5', 's[32:35]', 's48', mods='offen sc1'); vq.issue(('P',))
        if i in pend: cvt_store(160+8*pend[i], ACC2+16*pend[i], 's52', 2*pend[i])
    assert len(done_bar) == 5 and rli == len(rl)
    cvt_store(160+32, ACC2+64, 's52', 8)
    st.stamp('mdone')
    a.s_barrier()
    set_flag('s43')
    if OPT['INSTR']:
        st.stamp('flag')
        a.s_cmp_eq_u32('s39', 0); a.s_cbranch_scc0('L_c_end'); st.flush(1); a.label('L_c_end')
    a.s_endpgm()
    a.label('L_end')
    a.s_endpgm()

def build(path):
    hdr = open('cdna_kernels/%s.s.ref' % NAME).read().split('\n')
    head = [l for l in hdr if l.startswith(';') and '@launch' not in l and 'Override' not in l and 'grid=ceil' not in l]
    out = '\n'.join(head) + '\n'
    out += '; @launch grid=(256,1,1) block=(512,1,1) lds=163840\n'
    out += '.amdgcn_target "amdgcn-amd-amdhsa--gfx950"\n.text\n'
    a = Asm(); gen(a); out += a.finalize()
    out += f""".section .rodata,"a"
.p2align 6
.amdhsa_kernel {KN}
  .amdhsa_next_free_vgpr 256
  .amdhsa_next_free_sgpr 102
  .amdhsa_accum_offset 256
  .amdhsa_group_segment_fixed_size 0
  .amdhsa_kernarg_size 104
  .amdhsa_user_sgpr_count 2
  .amdhsa_user_sgpr_kernarg_segment_ptr 1
  .amdhsa_system_sgpr_workgroup_id_x 1
.end_amdhsa_kernel
"""
    open(path, 'w').write(out)

if __name__ == '__main__':
    path = sys.argv[1]
    for arg in sys.argv[2:]:
        k, v = arg.split('=')
        OPT[k] = int(v) if isinstance(OPT[k], int) else v
    build(path)
```

```python
import sys, struct
from asmlib import Asm, vr, sr

NAME = "concat_heads__gqa_block_cached__mha_block_cached__near_ridge"
KN = NAME + "_kernel"
OPT = dict(NT_KV='', NT_W='', NT_X='', NT_WO='', INSTR=0, SPIN_MAX=200000, CSTAGES=2, PL_K=1, PC_K=9, ROTQ=0, ROTW=0, PUB_K=1, KLATE=0, LOOK=3)
PX_OFF = 0
P_OFF = 16 << 20
P_BYTES = 256*40960
FP_OFF = 28 << 20
N_OFF = FP_OFF + 128*128
WS_SIZE = N_OFF + 128
SLOT = 40960
T_OFF = 64 << 20
NONCE_C = 0x9E3779B9
NST = 22

class Q:
    def __init__(self, a, name, mx): self.a = a; self.q = []; self.name = name; self.mx = mx
    def issue(self, tag): self.q.append(tag)
    def has(self, tag): return tag in self.q
    def wait(self, tags):
        idx = -1
        for i, t in enumerate(self.q):
            if t in tags: idx = i
        if idx < 0: return
        n = min(len(self.q) - 1 - idx, self.mx)
        self.a.s_waitcnt(f'{self.name}({n})')
        self.q = self.q[len(self.q) - n:] if n else []
    def waitall(self):
        self.a.s_waitcnt(f'{self.name}(0)'); self.q = []

class Stamps:
    def __init__(self, a, base_sgpr=64): self.a = a; self.n = 0; self.base = base_sgpr; self.names = []
    def stamp(self, name=''):
        if not OPT['INSTR']: return
        if OPT['INSTR'] == 3 and name not in ('start', 'd', 'k', 'k2', 'q0', 'end', 'pre', 'B0', 'flag'): return
        assert self.n < 16, self.names
        self.a.s_memrealtime(sr(self.base+2*self.n, 2)); self.n += 1; self.names.append(name)
    def flush(self, slot):
        if not OPT['INSTR']: return
        a = self.a
        print(f'stamps slot {slot}:', ' '.join(self.names), file=sys.stderr)
        a.s_waitcnt('lgkmcnt(0)')
        a.s_mov_b32('s96', 's6'); a.s_and_b32('s97', 's7', '0xffff'); a.s_mov_b32('s98', hex(T_OFF + (4 << 20))); a.s_mov_b32('s99', '0x20000')
        a.s_lshl_b32('s3', 's2', 9); a.s_add_u32('s3', 's3', hex(T_OFF + slot*128))
        a.v_mov_b32('v2', 0)
        a.s_mov_b64('exec', 1)
        for i in range(self.n):
            a.v_mov_b32('v3', sr(self.base+2*i))
            a.buffer_store_dword('v3', 'v2', 's[96:99]', 's3', mods=f'offen offset:{4*i}')
        a.s_mov_b64('exec', -1)

def srd(a, d, lo, hi, size):
    a.s_mov_b32(sr(d), sr(lo)); a.s_and_b32(sr(d+1), sr(hi), '0xffff'); a.s_mov_b32(sr(d+2), hex(size)); a.s_mov_b32(sr(d+3), '0x20000')
def M(*parts): return ' '.join(p for p in parts if p)
def offm(off): return f'offset:{off}' if off else ''

def get_nonce(a, vtmp, sdst, tag):
    L = f'nonce_{tag}'
    a.s_mov_b32('s51', 0)
    a.label(L)
    a.v_mov_b32(vtmp, 0)
    a.buffer_load_dword(vtmp, vtmp, 's[60:63]', 0, mods='offen sc1')
    a.s_waitcnt('vmcnt(0)')
    a.v_readfirstlane_b32(sdst, vtmp)
    a.s_add_u32('s51', 's51', 1)
    a.s_cmp_gt_u32('s51', OPT['SPIN_MAX']); a.s_cbranch_scc1(L + '_done')
    a.s_cmp_eq_u32(sdst, 0); a.s_cbranch_scc1(L)
    a.label(L + '_done')

def ring_setup(a, lw, vb, sa='s44', sb='s45'):
    a.v_lshrrev_b32('v2', 3, 'v1')
    a.v_and_b32('v3', 7, 'v1')
    a.v_lshrrev_b32('v4', 1, 'v2'); a.v_and_b32('v5', 1, 'v4'); a.v_lshlrev_b32('v5', 2, 'v5'); a.v_xor_b32('v5', 'v3', 'v5')
    a.v_lshlrev_b32('v5', 4, 'v5')
    a.s_mul_i32('s3', 's37', 384)
    a.s_mul_i32('s4', lw, 16*12288)
    a.s_add_u32('s3', 's3', 's4')
    a.s_mov_b32('s5', 12288)
    a.v_mul_lo_u32('v6', 'v2', 's5')
    a.v_add_u32('v6', 'v6', 'v5')
    a.v_add_u32(vr(vb), 's3', 'v6')
    a.v_add_u32(vr(vb+1), hex(8*12288), vr(vb))
    a.s_lshl_b32('s3', 's38', 7); a.s_lshl_b32('s4', lw, 5); a.s_add_u32('s3', 's3', 's4'); a.s_mul_i32('s3', 's3', 1280)
    a.s_mov_b32('s5', 1280)
    a.v_mul_lo_u32('v6', 'v2', 's5'); a.v_add_u32('v6', 's3', 'v6')
    a.v_xor_b32('v5', 'v3', 'v4'); a.v_lshlrev_b32('v7', 4, 'v5')
    a.v_xor_b32('v5', 4, 'v5'); a.v_lshlrev_b32('v5', 4, 'v5')
    for i in range(4):
        a.v_add_u32(vr(vb+4+i), 'v6', 'v7' if i % 2 == 0 else 'v5')
        if i: a.v_add_u32(vr(vb+4+i), hex(i*8*1280), vr(vb+4+i))
    a.s_lshl_b32(sa, lw, 11)
    a.s_lshl_b32(sb, lw, 12)

def q_items(a, vq, vb, s, sa='s44', sb='s45'):
    slot = (s % 4) * SLOT
    items = []
    for rg in range(2):
        for t2 in range(3):
            def f(rg=rg, t2=t2, first=(rg == 0 and t2 == 0)):
                if first:
                    if OPT['ROTQ']:
                        a.s_mul_i32('s3', 's38', 5); a.s_lshr_b32('s3', 's3', 1); a.s_add_u32('s3', 's3', s)
                        a.s_cmp_ge_u32('s3', 10); a.s_cselect_b32('s4', 10, 0); a.s_sub_u32('s3', 's3', 's4')
                        a.s_mul_i32('s46', 's3', 64*12288); a.s_lshl_b32('s47', 's3', 7)
                    else:
                        a.s_mov_b32('s46', hex(s*64*12288)); a.s_mov_b32('s47', s*128)
                a.s_add_u32('m0', sa, hex(slot + t2*8192 + rg*1024 - t2*128))
                a.buffer_load_dwordx4(vr(vb+rg), 's[20:23]', 's46', mods=M('offen', offm(t2*128), OPT['NT_W'], 'lds')); vq.issue(('S', s))
            items.append(f)
    for i in range(4):
        def f(i=i):
            a.s_add_u32('m0', sb, hex(slot + 24576 + i*1024))
            a.buffer_load_dwordx4(vr(vb+4+i), 's[16:19]', 's47', mods=M('offen', OPT['NT_X'], 'lds')); vq.issue(('S', s))
        items.append(f)
    return items

def gen(a):
    a.raw('.p2align 8'); a.raw(f'.globl {KN}'); a.raw(f'.type {KN},@function'); a.label(KN)
    a.s_cmp_ge_u32('s2', 256); a.s_cbranch_scc1('L_end')
    a.s_and_b32('s3', 's2', 7)
    a.s_lshr_b32('s36', 's3', 2)
    a.s_mul_i32('s4', 's36', 40)
    a.s_load_dwordx8('s[8:15]', 's[0:1]', 's4')
    a.s_add_u32('s4', 's4', 32)
    a.s_load_dwordx2('s[48:49]', 's[0:1]', 's4')
    a.s_load_dwordx4('s[56:59]', 's[0:1]', 80)
    a.s_load_dwordx2('s[6:7]', 's[0:1]', 96)
    a.s_and_b32('s3', 's3', 3)
    a.s_lshl_b32('s3', 's3', 3)
    a.s_lshr_b32('s4', 's2', 3)
    a.s_and_b32('s5', 's4', 7)
    a.s_or_b32('s37', 's3', 's5')
    a.s_lshr_b32('s38', 's4', 3)
    a.v_lshrrev_b32('v1', 6, 'v0')
    a.v_readfirstlane_b32('s39', 'v1')
    a.v_and_b32('v1', 63, 'v0')
    a.s_lshr_b32('s40', 's37', 2)
    a.s_and_b32('s41', 's37', 3)
    a.s_cmp_lt_u32('s39', 4); a.s_cbranch_scc1('L_compute')

    a.s_sub_u32('s42', 's39', 4)
    st = Stamps(a); st.stamp('start')
    ring_setup(a, 's42', 8)
    if OPT['INSTR'] == 3:
        a.s_waitcnt('lgkmcnt(0)'); st.stamp('k'); a.s_waitcnt('lgkmcnt(0)'); st.stamp('k2'); a.s_waitcnt('lgkmcnt(0)')
    if OPT['INSTR'] == 2: st.stamp('setup')
    a.s_waitcnt('lgkmcnt(0)')
    if OPT['INSTR'] == 2: st.stamp('karg')
    srd(a, 20, 14, 15, 640*6144*2)
    srd(a, 16, 8, 9, 512*640*2)
    vq = Q(a, 'vmcnt', 63)
    for f in q_items(a, vq, 8, 0):
        f()
        if OPT['INSTR'] == 3: st.stamp('d')
    if OPT['INSTR'] == 2: st.stamp('st0')
    srd(a, 24, 10, 11, 16*32*12288)
    a.s_mov_b32('s5', 3277)
    a.s_lshl_b32('s3', 's38', 2); a.s_add_u32('s3', 's3', 's42'); a.s_lshl_b32('s3', 's3', 5); a.s_add_u32('s3', 's3', 's37'); a.s_mul_i32('s3', 's3', 12288)
    for b in range(5):
        a.v_add_u32('v2', 64*b, 'v1')
        a.v_mul_lo_u32('v3', 'v2', 's5'); a.v_lshrrev_b32('v3', 16, 'v3')
        a.v_mul_u32_u24('v4', 20, 'v3'); a.v_sub_u32('v4', 'v2', 'v4')
        a.v_bfe_u32('v5', 'v3', 2, 2); a.v_xor_b32('v4', 'v4', 'v5')
        a.v_mul_u32_u24('v3', 384, 'v3'); a.v_lshl_add_u32('v3', 'v4', 4, 'v3')
        a.v_add_u32(vr(32+b), 's3', 'v3')
    a.s_mul_i32('s50', 's42', 10240)
    a.s_mov_b32('s46', 16*384)
    for aa in range(2):
        for b in range(5):
            a.s_add_u32('m0', 's50', hex(3*SLOT + aa*5120 + b*1024))
            a.buffer_load_dwordx4(vr(32+b), 's[24:27]', 's46' if aa else 0, mods=M('offen', OPT['NT_KV'], 'lds')); vq.issue(('S', 1 if OPT['KLATE'] else 0))
    if OPT['INSTR'] == 2: st.stamp('kst')
    srd(a, 28, 12, 13, 16*32*12288)
    srd(a, 52, 48, 49, 6144*640*2)
    srd(a, 32, 6, 7, WS_SIZE)
    srd(a, 60, 58, 59, 256)
    srd(a, 56, 56, 57, 16*32*1280*2)
    WV = 16
    a.s_mov_b32('s5', 3277)
    a.s_mul_i32('s3', 's40', 768*1280); a.s_mul_i32('s4', 's41', 320); a.s_add_u32('s3', 's3', 's4')
    a.s_mul_i32('s4', 's42', 16*1280); a.s_add_u32('s3', 's3', 's4')
    a.s_mov_b32('s4', 1280)
    for b in range(5):
        a.v_add_u32('v2', 64*b, 'v1')
        a.v_mul_lo_u32('v3', 'v2', 's5'); a.v_lshrrev_b32('v3', 16, 'v3')
        a.v_mul_u32_u24('v4', 20, 'v3'); a.v_sub_u32('v4', 'v2', 'v4')
        a.v_mul_lo_u32('v3', 'v3', 's4'); a.v_lshl_add_u32('v3', 'v4', 4, 'v3')
        a.v_add_u32(vr(WV+b), 's3', 'v3')
    VV = 21
    a.v_lshrrev_b32('v2', 3, 'v1'); a.v_and_b32('v3', 7, 'v1'); a.v_lshrrev_b32('v4', 1, 'v2')
    a.v_xor_b32('v5', 'v3', 'v4'); a.v_lshlrev_b32('v7', 4, 'v5'); a.v_xor_b32('v5', 4, 'v5'); a.v_lshlrev_b32('v5', 4, 'v5')
    a.v_mul_u32_u24('v6', 384, 'v2')
    a.s_lshl_b32('s3', 's38', 2); a.s_add_u32('s3', 's3', 's42'); a.s_lshl_b32('s3', 's3', 5); a.s_lshl_b32('s4', 's40', 2); a.s_add_u32('s3', 's3', 's4'); a.s_mul_i32('s3', 's3', 12288)
    a.v_add_u32('v6', 's3', 'v6')
    for i in range(4):
        a.v_add_u32(vr(VV+i), 'v6', 'v7' if i % 2 == 0 else 'v5')
        if i: a.v_add_u32(vr(VV+i), hex(i*8*384), vr(VV+i))
    a.s_mul_i32('s50', 's42', 5120)
    def w_items(s):
        sg = s - 10; hr, sub = divmod(sg, 3)
        slot = (s % 4) * SLOT
        items = []
        for b in range(5):
            def f(b=b):
                if b == 0:
                    a.s_add_u32('s3', 's41', hr); a.s_and_b32('s3', 's3', 3)
                    a.s_mul_i32('s46', 's3', 192*1280); a.s_mul_i32('s47', 's3', 12288)
                    if OPT['ROTW']:
                        a.s_add_u32('s3', 's38', sub)
                        a.s_cmp_ge_u32('s3', 3); a.s_cselect_b32('s4', 3, 0); a.s_sub_u32('s3', 's3', 's4')
                        a.s_cmp_ge_u32('s3', 3); a.s_cselect_b32('s4', 3, 0); a.s_sub_u32('s3', 's3', 's4')
                        a.s_mul_i32('s4', 's3', 64*1280); a.s_add_u32('s46', 's46', 's4')
                        a.s_lshl_b32('s4', 's3', 7); a.s_add_u32('s47', 's47', 's4')
                    else:
                        a.s_add_u32('s46', 's46', hex(64*sub*1280)); a.s_add_u32('s47', 's47', sub*128)
                a.s_add_u32('m0', 's50', hex(slot + b*1024))
                a.buffer_load_dwordx4(vr(WV+b), 's[52:55]', 's46', mods=M('offen', OPT['NT_WO'], 'lds')); vq.issue(('S', s))
            items.append(f)
        for i in range(4):
            def f(i=i):
                a.s_add_u32('m0', 's45', hex(slot + 20480 + i*1024))
                a.buffer_load_dwordx4(vr(VV+i), 's[28:31]', 's47', mods=M('offen', OPT['NT_KV'], 'lds')); vq.issue(('S', s))
            items.append(f)
        return items
    def stage_items(s): return q_items(a, vq, 8, s) if s < 10 else w_items(s)
    CS = OPT['CSTAGES']
    st.stamp('pre')
    vq.wait([('S', 0)]); st.stamp('q0'); a.s_barrier()
    nxt = CS + 1
    for i in range(0, NST-1):
        if i in ((2, 4, 6, 8, 10, 12, 15, 18) if OPT['INSTR'] == 1 else (1, 2, 3, 4)): st.stamp(f'B{i}')
        if OPT['KLATE'] and i == 1:
            while nxt <= 2:
                for f in stage_items(nxt): f()
                nxt += 1
            a.s_barrier()
        while nxt <= min(NST-1, i+OPT['LOOK']) and not (i == 0 and nxt == 3):
            for f in stage_items(nxt): f()
            nxt += 1
        vq.wait([('S', i+1)])
        a.s_barrier()
    get_nonce(a, 'v2', 's43', 'ld')
    a.s_lshl_b32('s3', 's36', 2); a.s_add_u32('s3', 's3', 's38'); a.s_lshl_b32('s3', 's3', 2); a.s_add_u32('s3', 's3', 's41')
    a.s_lshr_b32('s4', 's40', 1)
    a.s_lshl_b32('s5', 's3', 2); a.s_add_u32('s5', 's5', 's4'); a.s_lshl_b32('s5', 's5', 7); a.s_add_u32('s44', 's5', hex(FP_OFF))
    a.s_and_b32('s5', 's40', 1); a.s_mul_i32('s5', 's5', 5)
    a.s_add_u32('s45', 's5', 's42')
    a.s_mul_i32('s46', 's3', 8*40960); a.s_mul_i32('s47', 's4', 10240); a.s_add_u32('s46', 's46', 's47'); a.s_add_u32('s46', 's46', hex(P_OFF))
    a.s_lshl_b32('s47', 's38', 2); a.s_add_u32('s47', 's47', 's4'); a.s_mul_i32('s47', 's47', 32*2560)
    a.s_mul_i32('s3', 's36', 1280); a.s_add_u32('s47', 's47', 's3'); a.s_mul_i32('s3', 's41', 320); a.s_add_u32('s47', 's47', 's3')
    a.v_and_b32('v2', 31, 'v1'); a.v_mul_u32_u24('v2', 2560, 'v2'); a.v_lshrrev_b32('v3', 5, 'v1'); a.v_lshl_add_u32('v2', 'v3', 4, 'v2')
    a.v_and_b32('v4', 7, 'v1'); a.v_lshlrev_b32('v4', 2, 'v4')
    a.v_lshlrev_b32('v30', 4, 'v1')
    a.s_barrier()
    st.stamp('D')
    a.s_mov_b32('s50', 0)
    a.label('L_pollP')
    a.buffer_load_dword('v5', 'v4', 's[32:35]', 's44', mods='offen sc1')
    a.s_waitcnt('vmcnt(0)')
    a.v_cmp_ne_u32('vcc', 's43', 'v5')
    a.s_add_u32('s50', 's50', 1)
    a.s_cmp_gt_u32('s50', OPT['SPIN_MAX']); a.s_cbranch_scc1('L_pollP_done')
    a.s_cmp_lg_u64('vcc', 0); a.s_cbranch_scc1('L_pollP')
    a.label('L_pollP_done')
    st.stamp('polled')
    def reduce_load(stu, base):
        a.s_lshl_b32('s3', stu, 10); a.s_add_u32('s3', 's3', 's46')
        for kk in range(8):
            a.buffer_load_dwordx4(vr(base+4*kk, 4), 'v30', 's[32:35]', 's3', mods='offen sc1')
            if kk < 7: a.s_add_u32('s3', 's3', 40960)
    def reduce_sum(stu, base, first_wait, dst):
        for kk in range(8):
            a.s_waitcnt(f'vmcnt({first_wait-kk})')
            for i in range(4):
                src = vr(base+4*kk+i)
                if kk == 0:
                    a.v_lshlrev_b32(vr(8+2*i), 16, src); a.v_and_b32(vr(9+2*i), '0xffff0000', src)
                else:
                    a.v_lshlrev_b32('v16', 16, src); a.v_and_b32('v17', '0xffff0000', src)
                    a.v_add_f32(vr(8+2*i), vr(8+2*i), 'v16'); a.v_add_f32(vr(9+2*i), vr(9+2*i), 'v17')
        for i in range(4): a.v_cvt_pk_bf16_f32(vr(dst+i), vr(8+2*i), vr(9+2*i))
        a.s_lshl_b32('s3', stu, 5); a.s_add_u32('s3', 's3', 's47')
        a.buffer_store_dwordx4(vr(dst, 4), 'v2', 's[56:59]', 's3', mods='offen')
    a.s_cmp_eq_u32('s42', 0); a.s_cbranch_scc1('L_red2')
    reduce_load('s45', 64); reduce_sum('s45', 64, 7, 24)
    a.s_branch('L_red_done')
    a.label('L_red2')
    a.s_add_u32('s50', 's45', 4)
    reduce_load('s45', 64); reduce_load('s50', 96)
    reduce_sum('s45', 64, 15, 24)
    reduce_sum('s50', 96, 8, 20)
    a.label('L_red_done')
    if OPT['INSTR']:
        st.stamp('red'); a.s_waitcnt('vmcnt(0)'); st.stamp('end')
        a.s_cmp_eq_u32('s42', 0); a.s_cbranch_scc0('L_ld_end'); st.flush(0); a.label('L_ld_end')
    a.s_endpgm()

    a.label('L_compute')
    AF = 32; XF = 56; ACC = 64; SA = 32; KF = 160; QB = 208
    LN16 = 'v31'
    st = Stamps(a)
    vq = Q(a, 'vmcnt', 63)
    a.v_mov_b32('v30', hex(N_OFF))
    a.s_waitcnt('lgkmcnt(0)')
    srd(a, 32, 6, 7, WS_SIZE)
    def early_setup():
        ring_setup(a, 's39', 208, 's54', 's55')
        srd(a, 20, 14, 15, 640*6144*2)
        srd(a, 16, 8, 9, 512*640*2)
        srd(a, 24, 10, 11, 16*32*12288)
        a.v_and_b32('v216', 31, 'v1'); a.v_mul_u32_u24('v216', 384, 'v216'); a.v_lshrrev_b32('v3', 5, 'v1'); a.v_lshl_add_u32('v216', 'v3', 4, 'v216')
        a.s_lshl_b32('s3', 's38', 2); a.s_add_u32('s3', 's3', 's39'); a.s_lshl_b32('s3', 's3', 5); a.s_add_u32('s3', 's3', 's37'); a.s_mul_i32('s56', 's3', 12288)
    def early_issue():
        for s_ in range(1, OPT['CSTAGES']+1):
            for f in q_items(a, vq, 208, s_, 's54', 's55'): f()
        for s12 in (10, 11):
            a.buffer_load_dwordx4(vr(KF+4*s12, 4), 'v216', 's[24:27]', 's56', mods=M('offen', offm(s12*32), OPT['NT_KV'])); vq.issue(('K',))
    srd(a, 60, 58, 59, 256)
    a.s_or_b32('s50', 's2', 's39'); a.s_cmp_eq_u32('s50', 0); a.s_cbranch_scc0('L_no_nonce0')
    a.buffer_load_dword('v29', 'v30', 's[32:35]', 0, mods='offen sc1')
    a.label('L_no_nonce0')
    early_setup()
    if not OPT['KLATE']: early_issue()
    a.s_cmp_eq_u32('s50', 0); a.s_cbranch_scc0('L_no_nonce')
    a.s_waitcnt('vmcnt(0)' if OPT['KLATE'] else f"vmcnt({10*OPT['CSTAGES']+2})")
    a.v_add_u32('v29', hex(NONCE_C), 'v29')
    a.v_cmp_eq_u32('vcc', 0, 'v29')
    a.v_mov_b32('v4', hex(NONCE_C))
    a.v_cndmask_b32('v29', 'v29', 'v4', 'vcc')
    a.s_mov_b64('exec', 1)
    a.buffer_store_dword('v29', 'v30', 's[32:35]', 0, mods='offen sc1')
    a.v_mov_b32('v4', 0)
    a.buffer_store_dword('v29', 'v4', 's[60:63]', 0, mods='offen sc1')
    a.s_mov_b64('exec', -1)
    a.label('L_no_nonce')
    T = 32
    hf, G2, r_, d48, t1, t2_, t3, t4 = [vr(T+i) for i in range(8)]
    a.v_lshrrev_b32(hf, 5, 'v1'); a.v_bfe_u32(G2, 'v1', 4, 1); a.v_bfe_u32(r_, 'v1', 2, 2)
    a.v_and_b32(d48, 1, 'v1'); a.v_lshlrev_b32(d48, 1, d48); a.v_bfe_u32(t1, 'v1', 1, 1); a.v_or_b32(d48, d48, t1)
    a.v_lshl_add_u32(d48, G2, 2, d48); a.v_lshlrev_b32(d48, 3, d48)
    a.v_lshrrev_b32(t1, 1, r_); a.v_lshlrev_b32(t1, 6, t1); a.v_add_u32(t1, d48, t1)
    a.v_lshl_add_u32(t2_, hf, 3, r_)
    a.v_lshlrev_b32(t3, 7, t2_); a.v_add_u32('v2', t3, t1)
    a.v_xor_b32('v3', 64, 'v2')
    a.v_add_u32('v4', hex(2*SLOT), 'v2'); a.v_add_u32('v5', hex(2*SLOT), 'v3')
    a.v_mul_u32_u24('v14', 320, t2_); a.v_add_u32('v14', 'v14', d48)
    a.v_add_u32('v15', hex(2*SLOT), 'v14')
    a.v_and_b32(t3, 31, 'v1'); a.v_bfe_u32(t4, 'v1', 1, 3); a.v_xor_b32(t4, t4, hf); a.v_lshlrev_b32(t4, 4, t4)
    a.s_lshl_b32('s3', 's39', 12); a.s_add_u32('s3', 's3', 20480)
    a.v_lshl_add_u32(G2, t3, 7, t4); a.v_add_u32('v6', 's3', G2)
    for s in range(1, 4): a.v_xor_b32(vr(6+s), 32*s, 'v6')
    for s in range(4): a.v_add_u32(vr(10+s), hex(2*SLOT), vr(6+s))
    a.v_mul_u32_u24('v16', 320, t3); a.v_bfe_u32('v17', 'v1', 2, 2); a.v_xor_b32('v17', 'v17', hf); a.v_lshl_add_u32('v16', 'v17', 4, 'v16')
    a.s_mul_i32('s3', 's39', 10240); a.s_add_u32('s3', 's3', 3*SLOT); a.v_add_u32('v16', 's3', 'v16')
    a.v_xor_b32('v17', 32, 'v16')
    a.v_lshlrev_b32(LN16, 4, 'v1')
    a.s_lshl_b32('s3', 's36', 2); a.s_add_u32('s3', 's3', 's38')
    a.s_lshl_b32('s4', 's3', 3); a.s_add_u32('s4', 's4', 's40'); a.s_lshl_b32('s4', 's4', 4); a.s_add_u32('s4', 's4', 's39'); a.s_lshl_b32('s45', 's4', 12)
    a.s_add_u32('s45', 's45', hex(PX_OFF))
    a.s_lshl_b32('s3', 's3', 2); a.s_add_u32('s3', 's3', 's41')
    a.s_lshl_b32('s4', 's3', 3); a.s_add_u32('s4', 's4', 's40'); a.s_mul_i32('s4', 's4', 40960); a.s_mul_i32('s5', 's39', 10240); a.s_add_u32('s4', 's4', 's5'); a.s_add_u32('s52', 's4', hex(P_OFF))
    a.s_lshl_b32('s4', 's3', 2); a.s_add_u32('s4', 's4', 's39'); a.s_lshl_b32('s4', 's4', 7); a.s_lshl_b32('s5', 's40', 2); a.s_add_u32('s4', 's4', 's5'); a.s_add_u32('s43', 's4', hex(FP_OFF))

    q = Q(a, 'lgkmcnt', 15)
    def rdA(t, n):
        st_, s = divmod(n, 4); slot = st_ % 4
        base = (2 if slot < 2 else 4) + (t % 2)
        off = (slot % 2) * SLOT + (t//2)*8192 + s*2048
        for e in range(2):
            a.ds_read_b64_tr_b16(vr(AF+4*t+2*e, 2), vr(base), mods=offm(off+e*512))
            q.issue(('A', t, n))
    def rdX(n):
        st_, s = divmod(n, 4); slot = st_ % 4
        base = (6 if slot < 2 else 10) + s
        a.ds_read_b128(vr(XF+4*(n % 2), 4), vr(base), mods=offm((slot % 2)*SLOT + (4096 if st_ < 10 else 0)))
        q.issue(('X', n))
    def mf(t, n):
        q.wait([('A', t, n), ('X', n)])
        a.v_mfma_f32_32x32x16_bf16(vr(ACC+16*t, 16), vr(AF+4*t, 4), vr(XF+4*(n % 2), 4), '0' if n == 0 else vr(ACC+16*t, 16))
    def cvtQ(t):
        for i in range(8): a.v_cvt_pk_bf16_f32(vr(QB+8*t+i), vr(ACC+16*t+2*i), vr(ACC+16*t+2*i+1))
    if OPT['KLATE']: early_issue()
    st.stamp('pre')
    a.s_barrier()
    st.stamp('B0')
    rdX(0)
    for t in range(6): rdA(t, 0)
    def rdK(s12):
        a.ds_read_b128(vr(KF+4*s12, 4), vr(16 + (s12 & 1)), mods=offm((s12 >> 1)*64)); q.issue(('K', s12))
    for n in range(40):
        s = n % 4
        if s < 3:
            rdX(n+1)
            for t in range(6):
                mf(t, n); rdA(t, n+1)
                kn = n - 4 if OPT['KLATE'] else n
                if 0 <= kn < 2 and t < 5: rdK(5*kn + t)
            if OPT['KLATE'] and n == 5:
                q.wait([('K', 9)]); a.s_barrier()
        else:
            for t in range(3): mf(t, n)
            q.waitall()
            vq.wait([('S', n//4 + 1)])
            if n == 23:
                a.v_mov_b32('v28', 0)
                a.buffer_load_dword('v29', 'v28', 's[60:63]', 0, mods='offen sc1'); vq.issue(('N',))
            a.s_barrier()
            if n < 39:
                rdX(n+1); rdA(0, n+1); rdA(1, n+1)
                mf(3, n); rdA(2, n+1); mf(4, n); rdA(3, n+1); mf(5, n); rdA(4, n+1); rdA(5, n+1)
            else:
                mf(3, n); cvtQ(0); mf(4, n); cvtQ(1); mf(5, n); cvtQ(2)
    st.stamp('qdone')
    vq.wait([('K',)])
    def mS(s12):
        a.v_mfma_f32_32x32x16_bf16(vr(SA, 16), vr(KF+4*s12, 4), vr(QB+4*s12, 4), '0' if s12 == 0 else vr(SA, 16))
    mS(0); mS(1); cvtQ(3); mS(2); mS(3); cvtQ(4); mS(4); mS(5); cvtQ(5)
    for s12 in range(6, 12): mS(s12)
    OA = 64; VW = 160; AF2 = 176 - 176 + 0
    AF2 = 208 + 32
    S = lambda j: vr(SA+j)
    m0_, m1_ = 'v48', 'v49'
    a.v_max3_f32(m0_, S(0), S(1), S(2))
    for j in range(3, 15, 2): a.v_max3_f32(m0_, m0_, S(j), S(j+1))
    a.v_max_f32(m0_, m0_, S(15))
    a.v_mov_b32(m1_, m0_)
    a.v_permlane32_swap_b32(m0_, m1_)
    a.v_max_f32(m0_, m0_, m1_)
    c = 192 ** -0.5 * 1.4426950408889634
    cbits = struct.unpack('<I', struct.pack('<f', c))[0]
    a.s_mov_b32('s46', hex(cbits))
    a.v_mul_f32(m0_, 's46', m0_)
    for j in range(16): a.v_fma_f32(S(j), S(j), 's46', '-' + m0_)
    for j in range(16): a.v_exp_f32(S(j), S(j))
    a.v_add_f32('v50', S(0), S(1)); a.v_add_f32('v51', S(2), S(3))
    for j in range(4, 16, 2):
        a.v_add_f32('v50', 'v50', S(j)); a.v_add_f32('v51', 'v51', S(j+1))
    a.v_add_f32('v50', 'v50', 'v51')
    a.v_mov_b32('v51', 'v50')
    a.v_permlane32_swap_b32('v50', 'v51')
    a.v_add_f32('v50', 'v50', 'v51')
    a.v_rcp_f32('v50', 'v50')
    for j in range(16): a.v_mul_f32(S(j), S(j), 'v50')
    PR = {0: 240, 1: 248, 2: 144, 3: 152}
    for i in range(8): a.v_cvt_pk_bf16_f32(vr(PR[0]+i), S(2*i), S(2*i+1))
    st.stamp('smax')
    TG = 32
    def publish():
        vq.wait([('N',)])
        a.v_readfirstlane_b32('s47', 'v29')
        a.s_cmp_lg_u32('s47', 0); a.s_cbranch_scc1('L_have_nonce')
        get_nonce(a, 'v29', 's47', 'cp')
        a.label('L_have_nonce')
        vq.q = []
        for s_ in range(3):
            a.v_mov_b32(vr(TG+4*s_), vr(PR[0]+2*s_)); a.v_mov_b32(vr(TG+4*s_+1), 's47')
            a.v_mov_b32(vr(TG+4*s_+2), vr(PR[0]+2*s_+1)); a.v_mov_b32(vr(TG+4*s_+3), 's47')
        a.v_mov_b32('v24', vr(PR[0]+6)); a.v_mov_b32('v25', 's47'); a.v_mov_b32('v26', vr(PR[0]+7)); a.v_mov_b32('v27', 's47')
        a.s_lshl_b32('s3', 's41', 14); a.s_add_u32('s3', 's3', 's45')
        for s_ in range(4):
            a.buffer_store_dwordx4(vr([32, 36, 40, 24][s_], 4), LN16, 's[32:35]', 's3', mods=M('offen', offm(s_*1024), 'sc1')); vq.issue(('PS',))
        st.stamp('pstored')
    AF2 = 44
    VF2 = 16
    TL = 24
    RT = 32
    RTG = [32, 36, 40, 24]
    NK = 48
    def rdW(t, n2):
        s_, k = divmod(n2, 4); st_ = 10 + s_; slot = st_ % 4
        base = 14 if slot < 2 else 15
        off = (slot % 2)*SLOT + k*5120 + t*64
        for e in range(2):
            a.ds_read_b64_tr_b16(vr(AF2+4*t+2*e, 2), vr(base), mods=offm(off+e*1280))
            q.issue(('W', t, n2))
    def rdV(n2):
        s_, k = divmod(n2, 4); st_ = 10 + s_; slot = st_ % 4
        base = (6 if slot < 2 else 10) + k
        a.ds_read_b128(vr(VF2+4*(n2 % 2), 4), vr(base), mods=offm((slot % 2)*SLOT))
        q.issue(('V', n2))
    def mw(t, n2):
        q.wait([('W', t, n2), ('V', n2)])
        a.v_mfma_f32_32x32x16_bf16(vr(VW+16*t, 16), vr(VF2+4*(n2 % 2), 4), vr(AF2+4*t, 4), '0' if n2 % 12 == 0 else vr(VW+16*t, 16))
    def ldP(hr):
        a.s_add_u32('s3', 's41', hr); a.s_and_b32('s3', 's3', 3); a.s_lshl_b32('s3', 's3', 14); a.s_add_u32('s53', 's3', 's45')
        for s_ in range(4):
            a.buffer_load_dwordx4(vr(RTG[s_], 4), LN16, 's[32:35]', 's53', mods=M('offen', offm(s_*1024), 'sc1')); vq.issue(('PL', hr))
    def chkP(hr):
        L = f'L_chkP{hr}'
        a.s_mov_b32('s50', 0)
        a.s_waitcnt('vmcnt(0)'); vq.q = []
        a.s_branch(L + '_c')
        a.label(L)
        for s_ in range(4):
            a.buffer_load_dwordx4(vr(RTG[s_], 4), LN16, 's[32:35]', 's53', mods=M('offen', offm(s_*1024), 'sc1'))
        a.s_waitcnt('vmcnt(0)')
        a.label(L + '_c')
        a.v_xor_b32('v28', 's47', vr(RTG[0]+1))
        for s_ in range(4):
            for o in (1, 3):
                if s_ == 0 and o == 1: continue
                a.v_xor_b32('v29', 's47', vr(RTG[s_]+o)); a.v_or_b32('v28', 'v28', 'v29')
        a.v_cmp_ne_u32('vcc', 0, 'v28')
        a.s_add_u32('s50', 's50', 1)
        a.s_cmp_gt_u32('s50', OPT['SPIN_MAX']); a.s_cbranch_scc1(L + '_d')
        a.s_cmp_lg_u64('vcc', 0); a.s_cbranch_scc1(L)
        a.label(L + '_d')
        for s_ in range(4):
            a.v_mov_b32(vr(PR[hr]+2*s_), vr(RTG[s_])); a.v_mov_b32(vr(PR[hr]+2*s_+1), vr(RTG[s_]+2))
    def cvt_store(dst, acc, sbase, f0):
        for i in range(8): a.v_cvt_pk_bf16_f32(vr(dst+i), vr(acc+2*i), vr(acc+2*i+1))
        for u in range(2):
            f = f0+u
            so = sbase; off = f*1024
            if off >= 4096:
                a.s_add_u32('s46', sbase, hex(off & ~4095)); so = 's46'; off &= 4095
            a.buffer_store_dwordx4(vr(dst+4*u, 4), LN16, 's[32:35]', so, mods=M('offen', offm(off), 'sc1'))
            vq.issue(('ST',))
    rdV(0)
    for t in range(5): rdW(t, 0)
    cnt = 0
    for n2 in range(NK):
        hr, k12 = divmod(n2, 12)
        s = n2 % 4
        last = (n2 == NK-1)
        if s < 3:
            rdV(n2+1)
            for t in range(5):
                mw(t, n2); rdW(t, n2+1); cnt += 1
        else:
            for t in range(2): mw(t, n2); cnt += 1
            if not last:
                q.waitall(); a.s_barrier()
                if (n2//4) in (1, 4, 7): st.stamp(f'W{n2//4+1}')
                rdV(n2+1); rdW(0, n2+1); rdW(1, n2+1)
                mw(2, n2); rdW(2, n2+1); mw(3, n2); rdW(3, n2+1); mw(4, n2); rdW(4, n2+1)
            else:
                mw(2, n2); mw(3, n2); mw(4, n2)
            cnt += 3
        if n2 == OPT['PUB_K']: publish()
        if k12 == OPT['PL_K'] and hr >= 1: ldP(hr)
        if k12 == OPT['PC_K'] and hr >= 1: chkP(hr)
        if k12 == 11:
            for t in range(5):
                for i in range(8): a.v_cvt_pk_bf16_f32(vr(VW+16*t+i), vr(VW+16*t+2*i), vr(VW+16*t+2*i+1))
                for u in range(2):
                    a.v_mfma_f32_32x32x16_bf16(vr(OA+16*t, 16), vr(VW+16*t+4*u, 4), vr(PR[hr]+4*u, 4), '0' if (hr == 0 and u == 0) else vr(OA+16*t, 16))
                if hr == 3 and t >= 1: cvt_store(VW+16*(t-1)+8, OA+16*(t-1), 's52', 2*(t-1))
    cvt_store(VW+16*4+8, OA+64, 's52', 8)
    st.stamp('mdone')
    a.s_barrier()
    a.s_waitcnt('vmcnt(0)'); vq.q = []
    a.s_mov_b64('exec', 1)
    a.v_mov_b32('v5', 's47'); a.v_mov_b32('v6', 0)
    a.buffer_store_dword('v5', 'v6', 's[32:35]', 's43', mods='offen sc1')
    a.s_mov_b64('exec', -1)
    if OPT['INSTR']:
        st.stamp('flag')
        a.s_cmp_eq_u32('s39', 0); a.s_cbranch_scc0('L_c_end'); st.flush(1); a.label('L_c_end')
    a.s_endpgm()
    a.label('L_end')
    a.s_endpgm()

def build(path):
    hdr = open('cdna_kernels/%s.s.ref' % NAME).read().split('\n')
    head = [l for l in hdr if l.startswith(';') and '@launch' not in l and 'Override' not in l and 'grid=ceil' not in l]
    out = '\n'.join(head) + '\n'
    out += '; @launch grid=(256,1,1) block=(512,1,1) lds=163840\n'
    out += '.amdgcn_target "amdgcn-amd-amdhsa--gfx950"\n.text\n'
    a = Asm(); gen(a); out += a.finalize()
    out += f""".section .rodata,"a"
.p2align 6
.amdhsa_kernel {KN}
  .amdhsa_next_free_vgpr 256
  .amdhsa_next_free_sgpr 102
  .amdhsa_accum_offset 256
  .amdhsa_group_segment_fixed_size 0
  .amdhsa_kernarg_size 104
  .amdhsa_user_sgpr_count 2
  .amdhsa_user_sgpr_kernarg_segment_ptr 1
  .amdhsa_system_sgpr_workgroup_id_x 1
.end_amdhsa_kernel
"""
    open(path, 'w').write(out)

if __name__ == '__main__':
    path = sys.argv[1]
    for arg in sys.argv[2:]:
        k, v = arg.split('=')
        OPT[k] = int(v) if isinstance(OPT[k], int) else v
    build(path)
```

```python
import sys
from asmlib import Asm, vr, sr
from gen4 import srd, M, offm, KN, NAME, T_OFF
from gen6 import Q
def gen(mode):
    a = Asm()
    a.raw('.p2align 8'); a.raw(f'.globl {KN}'); a.raw(f'.type {KN},@function'); a.label(KN)
    a.s_cmp_ge_u32('s2', 256); a.s_cbranch_scc1('L_end')
    a.s_load_dwordx2('s[6:7]', 's[0:1]', 96)
    a.s_load_dwordx2('s[8:9]', 's[0:1]', 24)
    a.v_lshrrev_b32('v1', 6, 'v0'); a.v_readfirstlane_b32('s39', 'v1'); a.v_and_b32('v1', 63, 'v0')
    a.s_waitcnt('lgkmcnt(0)')
    srd(a, 20, 8, 9, 640*6144*2)
    a.v_lshlrev_b32('v2', 4, 'v0')
    for i in range(16):
        a.buffer_load_dwordx4(vr(160+4*i, 4), 'v2', 's[20:23]', 0, mods='offen')
        a.v_add_u32('v2', 8192, 'v2')
    a.s_waitcnt('vmcnt(0)')
    a.v_lshlrev_b32('v3', 4, 'v0')
    for i in range(16):
        a.ds_write_b128('v3', vr(160+4*i, 4)); a.v_add_u32('v3', 8192, 'v3')
    a.s_waitcnt('lgkmcnt(0)'); a.s_barrier()
    a.s_cmp_lt_u32('s39', 4); a.s_cbranch_scc0('L_idle')
    a.v_lshrrev_b32('v21', 4, 'v1'); a.v_bfe_u32('v23', 'v1', 2, 2); a.v_and_b32('v24', 3, 'v1'); a.v_lshlrev_b32('v24', 3, 'v24')
    a.v_lshrrev_b32('v25', 1, 'v23'); a.v_lshlrev_b32('v25', 6, 'v25'); a.v_add_u32('v24', 'v24', 'v25')
    a.v_and_b32('v22', 1, 'v21'); a.v_lshlrev_b32('v22', 5, 'v22'); a.v_add_u32('v24', 'v24', 'v22')
    a.v_lshl_add_u32('v26', 'v21', 3, 'v23'); a.v_lshlrev_b32('v26', 7, 'v26'); a.v_add_u32('v2', 'v26', 'v24'); a.v_xor_b32('v3', 64, 'v2')
    a.v_and_b32('v26', 15, 'v1'); a.v_bfe_u32('v27', 'v1', 1, 3); a.v_xor_b32('v27', 'v27', 'v21'); a.v_lshlrev_b32('v27', 4, 'v27')
    a.s_lshl_b32('s3', 's39', 12); a.s_add_u32('s3', 's3', 24576)
    a.v_lshl_add_u32('v28', 'v26', 7, 'v27'); a.v_add_u32('v6', 's3', 'v28'); a.v_xor_b32('v7', 64, 'v6')
    q = Q(a, 'lgkmcnt', 15)
    AF = 32; XF = 16; ACC = 64
    NB = 6 if mode == 0 else 8
    def rdA(t, n):
        off = (t//4)*8192 + (n % 2)*4096 + (t % 2)*0
        b = (n*12+t) % NB
        for e in range(2):
            a.ds_read_b64_tr_b16(vr(AF+4*b+2*e, 2), vr(2 + (t//2) % 2), mods=offm(off+e*512 + (t % 2)*32*0)); q.issue(('A', t, n))
    def rdX(n):
        for h in range(2):
            a.ds_read_b128(vr(XF+8*(n % 2)+4*h, 4), vr(6 + n % 2), mods=offm(h*2048)); q.issue(('X', n))
    def mf(t, n):
        b = (n*12+t) % NB
        q.wait([('A', t, n), ('X', n)])
        for h in range(2):
            a.v_mfma_f32_16x16x32_bf16(vr(ACC+8*t+4*h, 4), vr(AF+4*b, 4), vr(XF+8*(n % 2)+4*h, 4), '0' if n == 0 else vr(ACC+8*t+4*h, 4))
    a.s_barrier()
    a.s_memtime('s[64:65]'); a.s_memrealtime('s[66:67]')
    seq = [(t, n) for n in range(20) for t in range(12)]
    rdX(0)
    for i in range(NB-1): rdA(*seq[i])
    for i, (t, n) in enumerate(seq):
        if t == 4 and n+1 < 20: rdX(n+1)
        mf(t, n)
        if i + NB - 1 < len(seq): rdA(*seq[i+NB-1])
    a.s_waitcnt('lgkmcnt(0)')
    a.v_mov_b32('v5', 'v64'); a.v_mov_b32('v5', 'v159')
    a.s_memtime('s[68:69]'); a.s_memrealtime('s[70:71]')
    a.s_waitcnt('lgkmcnt(0)')
    a.s_sub_u32('s72', 's68', 's64'); a.s_sub_u32('s73', 's70', 's66')
    a.s_cmp_eq_u32('s39', 0); a.s_cbranch_scc0('L_fin')
    a.s_mov_b32('s96', 's6'); a.s_and_b32('s97', 's7', '0xffff'); a.s_mov_b32('s98', hex(T_OFF + (4 << 20))); a.s_mov_b32('s99', '0x20000')
    a.s_lshl_b32('s3', 's2', 3); a.s_add_u32('s3', 's3', hex(T_OFF))
    a.v_mov_b32('v30', 0); a.s_mov_b64('exec', 1)
    a.v_mov_b32('v31', 's72'); a.buffer_store_dword('v31', 'v30', 's[96:99]', 's3', mods='offen')
    a.v_mov_b32('v31', 's73'); a.buffer_store_dword('v31', 'v30', 's[96:99]', 's3', mods='offen offset:4')
    a.s_mov_b64('exec', -1)
    a.label('L_fin')
    a.s_endpgm()
    a.label('L_idle')
    a.s_barrier()
    a.v_lshlrev_b32('v2', 4, 'v1')
    for st_ in range(10):
        for i in range(10):
            a.s_mov_b32('m0', hex(100*1024 + (i % 16)*1024)); a.s_nop(0)
            a.buffer_load_dwordx4('v2', 's[20:23]', 0, mods=M('offen', offm((i % 4)*1024), 'lds'))
        a.s_waitcnt('vmcnt(20)')
    a.s_waitcnt('vmcnt(0)')
    a.s_endpgm()
    a.label('L_end'); a.s_endpgm()
    hdr = open('cdna_kernels/%s.s.ref' % NAME).read().split('\n')
    head = [l for l in hdr if l.startswith(';') and '@launch' not in l and 'Override' not in l and 'grid=ceil' not in l]
    out = '\n'.join(head) + '\n; @launch grid=(256,1,1) block=(512,1,1) lds=163840\n.amdgcn_target "amdgcn-amd-amdhsa--gfx950"\n.text\n' + a.finalize()
    out += f""".section .rodata,"a"
.p2align 6
.amdhsa_kernel {KN}
  .amdhsa_next_free_vgpr 256
  .amdhsa_next_free_sgpr 102
  .amdhsa_accum_offset 256
  .amdhsa_group_segment_fixed_size 0
  .amdhsa_kernarg_size 104
  .amdhsa_user_sgpr_count 2
  .amdhsa_user_sgpr_kernarg_segment_ptr 1
  .amdhsa_system_sgpr_workgroup_id_x 1
.end_amdhsa_kernel
"""
    return out
for m in range(2): open(f'p{m}.s', 'w').write(gen(m))
```

```python
import sys, struct
from asmlib import Asm, vr, sr

NAME = "concat_heads__gqa_block_cached__mha_block_cached__near_ridge"
KN = NAME + "_kernel"
OPT = dict(NT_KV='', NT_W='', NT_X='', NT_WO='', INSTR=0, SPIN_MAX=200000, CSTAGES=2, PL_K=1, PC_K=9, ROTQ=0, ROTW=0, PUB_K=10, KLATE=1, LOOK=3, SMK=2, XSPLIT=0, PRIO=0, LPRIO=0, PPOLL=0, PSLEEP=4, KS=2, KI=0, EXP=0, OUTPOL='')
PX_OFF = 0
P_OFF = 16 << 20
P_BYTES = 256*40960
FP_OFF = 28 << 20
N_OFF = FP_OFF + 128*128
WS_SIZE = N_OFF + 128
SLOT = 40960
T_OFF = 64 << 20
NONCE_C = 0x9E3779B9
NST = 22
def slot_of(s):
    E = OPT['KS'] + 4
    if s < E: return s % 3
    if s == E: return 3
    return slot_of(s - 4)

class Q:
    def __init__(self, a, name, mx): self.a = a; self.q = []; self.name = name; self.mx = mx
    def issue(self, tag): self.q.append(tag)
    def has(self, tag): return tag in self.q
    def wait(self, tags):
        idx = -1
        for i, t in enumerate(self.q):
            if t in tags: idx = i
        if idx < 0: return
        n = min(len(self.q) - 1 - idx, self.mx)
        self.a.s_waitcnt(f'{self.name}({n})')
        self.q = self.q[len(self.q) - n:] if n else []
    def waitall(self):
        self.a.s_waitcnt(f'{self.name}(0)'); self.q = []

class Stamps:
    def __init__(self, a, base_sgpr=64): self.a = a; self.n = 0; self.base = base_sgpr; self.names = []
    def stamp(self, name=''):
        if not OPT['INSTR']: return
        if OPT['INSTR'] == 3 and name not in ('start', 'd', 'k', 'k2', 'q0', 'end', 'pre', 'B0', 'flag'): return
        assert self.n < 16, self.names
        self.a.s_memrealtime(sr(self.base+2*self.n, 2)); self.n += 1; self.names.append(name)
    def flush(self, slot):
        if not OPT['INSTR']: return
        a = self.a
        print(f'stamps slot {slot}:', ' '.join(self.names), file=sys.stderr)
        a.s_waitcnt('lgkmcnt(0)')
        a.s_mov_b32('s96', 's6'); a.s_and_b32('s97', 's7', '0xffff'); a.s_mov_b32('s98', hex(T_OFF + (4 << 20))); a.s_mov_b32('s99', '0x20000')
        a.s_lshl_b32('s3', 's2', 9); a.s_add_u32('s3', 's3', hex(T_OFF + slot*128))
        a.v_mov_b32('v2', 0)
        a.s_mov_b64('exec', 1)
        for i in range(self.n):
            a.v_mov_b32('v3', sr(self.base+2*i))
            a.buffer_store_dword('v3', 'v2', 's[96:99]', 's3', mods=f'offen offset:{4*i}')
        a.s_mov_b64('exec', -1)

def srd(a, d, lo, hi, size):
    a.s_mov_b32(sr(d), sr(lo)); a.s_and_b32(sr(d+1), sr(hi), '0xffff'); a.s_mov_b32(sr(d+2), hex(size)); a.s_mov_b32(sr(d+3), '0x20000')
def M(*parts): return ' '.join(p for p in parts if p)
def offm(off): return f'offset:{off}' if off else ''

def get_nonce(a, vtmp, sdst, tag):
    L = f'nonce_{tag}'
    a.s_mov_b32('s51', 0)
    a.label(L)
    a.v_mov_b32(vtmp, 0)
    a.buffer_load_dword(vtmp, vtmp, 's[60:63]', 0, mods='offen sc1')
    a.s_waitcnt('vmcnt(0)')
    a.v_readfirstlane_b32(sdst, vtmp)
    a.s_add_u32('s51', 's51', 1)
    a.s_cmp_gt_u32('s51', OPT['SPIN_MAX']); a.s_cbranch_scc1(L + '_done')
    a.s_cmp_eq_u32(sdst, 0); a.s_cbranch_scc1(L)
    a.label(L + '_done')

def ring_setup(a, lw, vb, sa='s44', sb='s45'):
    a.v_lshrrev_b32('v2', 3, 'v1')
    a.v_and_b32('v3', 7, 'v1')
    a.v_lshrrev_b32('v4', 1, 'v2'); a.v_and_b32('v5', 1, 'v4'); a.v_lshlrev_b32('v5', 2, 'v5'); a.v_xor_b32('v5', 'v3', 'v5')
    a.v_lshlrev_b32('v5', 4, 'v5')
    a.s_mul_i32('s3', 's37', 384)
    a.s_mul_i32('s4', lw, 16*12288)
    a.s_add_u32('s3', 's3', 's4')
    a.s_mov_b32('s5', 12288)
    a.v_mul_lo_u32('v6', 'v2', 's5')
    a.v_add_u32('v6', 'v6', 'v5')
    a.v_add_u32(vr(vb), 's3', 'v6')
    a.v_add_u32(vr(vb+1), hex(8*12288), vr(vb))
    a.s_lshl_b32('s3', 's38', 7); a.s_lshl_b32('s4', lw, 5); a.s_add_u32('s3', 's3', 's4'); a.s_mul_i32('s3', 's3', 1280)
    a.s_mov_b32('s5', 1280)
    a.v_mul_lo_u32('v6', 'v2', 's5'); a.v_add_u32('v6', 's3', 'v6')
    a.v_xor_b32('v5', 'v3', 'v4'); a.v_lshlrev_b32('v7', 4, 'v5')
    a.v_xor_b32('v5', 4, 'v5'); a.v_lshlrev_b32('v5', 4, 'v5')
    for i in range(4):
        a.v_add_u32(vr(vb+4+i), 'v6', 'v7' if i % 2 == 0 else 'v5')
        if i: a.v_add_u32(vr(vb+4+i), hex(i*8*1280), vr(vb+4+i))
    a.s_lshl_b32(sa, lw, 11)
    a.s_lshl_b32(sb, lw, 12)

def q_items(a, vq, vb, s, sa='s44', sb='s45'):
    slot = slot_of(s) * SLOT
    items = []
    for rg in range(2):
        for t2 in range(3):
            def f(rg=rg, t2=t2, first=(rg == 0 and t2 == 0)):
                if first:
                    if OPT['ROTQ']:
                        if OPT['ROTQ'] == 1:
                            a.s_mul_i32('s3', 's38', 5); a.s_lshr_b32('s3', 's3', 1)
                        elif OPT['ROTQ'] == 2:
                            a.s_and_b32('s3', 's37', 7); a.s_lshl_b32('s4', 's36', 1); a.s_add_u32('s3', 's3', 's4')
                        else:
                            a.s_lshr_b32('s3', 's37', 3); a.s_mul_i32('s3', 's3', 5); a.s_lshr_b32('s3', 's3', 1); a.s_add_u32('s3', 's3', 's36')
                        a.s_add_u32('s3', 's3', s)
                        a.s_cmp_ge_u32('s3', 10); a.s_cselect_b32('s4', 10, 0); a.s_sub_u32('s3', 's3', 's4')
                        a.s_mul_i32('s46', 's3', 64*12288); a.s_lshl_b32('s47', 's3', 7)
                    else:
                        a.s_mov_b32('s46', hex(s*64*12288)); a.s_mov_b32('s47', s*128)
                a.s_add_u32('m0', sa, hex(slot + t2*8192 + rg*1024 - t2*128))
                if OPT['EXP'] == 2 and s > 0: return
                a.buffer_load_dwordx4(vr(vb+rg), 's[20:23]', 's46', mods=M('offen', offm(t2*128), OPT['NT_W'], 'lds')); vq.issue(('S', s))
            items.append(f)
    for i in range(4):
        def f(i=i):
            a.s_add_u32('m0', sb, hex(slot + 24576 + i*1024))
            if OPT['EXP'] == 1 and s > 0: return
            a.buffer_load_dwordx4(vr(vb+4+i), 's[16:19]', 's47', mods=M('offen', OPT['NT_X'], 'lds')); vq.issue(('S', s))
        items.append(f)
    return items

def gen(a):
    a.raw('.p2align 8'); a.raw(f'.globl {KN}'); a.raw(f'.type {KN},@function'); a.label(KN)
    a.s_cmp_ge_u32('s2', 256); a.s_cbranch_scc1('L_end')
    a.s_and_b32('s3', 's2', 7)
    a.s_lshr_b32('s36', 's3', 2)
    a.s_mul_i32('s4', 's36', 40)
    a.s_load_dwordx8('s[8:15]', 's[0:1]', 's4')
    a.s_add_u32('s4', 's4', 32)
    a.s_load_dwordx2('s[48:49]', 's[0:1]', 's4')
    a.s_load_dwordx4('s[56:59]', 's[0:1]', 80)
    a.s_load_dwordx2('s[6:7]', 's[0:1]', 96)
    a.s_and_b32('s3', 's3', 3)
    a.s_lshl_b32('s3', 's3', 3)
    a.s_lshr_b32('s4', 's2', 3)
    a.s_and_b32('s5', 's4', 7)
    a.s_or_b32('s37', 's3', 's5')
    a.s_lshr_b32('s38', 's4', 3)
    a.v_lshrrev_b32('v1', 6, 'v0')
    a.v_readfirstlane_b32('s39', 'v1')
    a.v_and_b32('v1', 63, 'v0')
    a.s_lshr_b32('s40', 's37', 2)
    a.s_and_b32('s41', 's37', 3)
    a.s_cmp_lt_u32('s39', 4); a.s_cbranch_scc1('L_compute')

    a.s_sub_u32('s42', 's39', 4)
    if OPT['LPRIO']: a.s_setprio(OPT['LPRIO'])
    st = Stamps(a); st.stamp('start')
    ring_setup(a, 's42', 8)
    if OPT['INSTR'] == 3:
        a.s_waitcnt('lgkmcnt(0)'); st.stamp('k'); a.s_waitcnt('lgkmcnt(0)'); st.stamp('k2'); a.s_waitcnt('lgkmcnt(0)')
    if OPT['INSTR'] == 2: st.stamp('setup')
    a.s_waitcnt('lgkmcnt(0)')
    if OPT['INSTR'] == 2: st.stamp('karg')
    srd(a, 20, 14, 15, 640*6144*2)
    srd(a, 16, 8, 9, 512*640*2)
    vq = Q(a, 'vmcnt', 63)
    for k_, f in enumerate(q_items(a, vq, 8, 0)):
        if OPT['XSPLIT'] and k_ >= 6: break
        f()
        if OPT['INSTR'] == 3: st.stamp('d')
    if OPT['INSTR'] == 2: st.stamp('st0')
    if OPT['INSTR'] == 2: st.stamp('kst')
    srd(a, 28, 12, 13, 16*32*12288)
    srd(a, 52, 48, 49, 6144*640*2)
    srd(a, 32, 6, 7, WS_SIZE)
    srd(a, 60, 58, 59, 256)
    srd(a, 56, 56, 57, 16*32*1280*2)
    WV = 16
    a.s_mov_b32('s5', 3277)
    a.s_mul_i32('s3', 's40', 768*1280); a.s_mul_i32('s4', 's41', 320); a.s_add_u32('s3', 's3', 's4')
    a.s_mul_i32('s4', 's42', 16*1280); a.s_add_u32('s3', 's3', 's4')
    a.s_mov_b32('s4', 1280)
    for b in range(5):
        a.v_add_u32('v2', 64*b, 'v1')
        a.v_mul_lo_u32('v3', 'v2', 's5'); a.v_lshrrev_b32('v3', 16, 'v3')
        a.v_mul_u32_u24('v4', 20, 'v3'); a.v_sub_u32('v4', 'v2', 'v4')
        a.v_mul_lo_u32('v3', 'v3', 's4'); a.v_lshl_add_u32('v3', 'v4', 4, 'v3')
        a.v_add_u32(vr(WV+b), 's3', 'v3')
    VV = 21
    a.v_lshrrev_b32('v2', 3, 'v1'); a.v_and_b32('v3', 7, 'v1'); a.v_lshrrev_b32('v4', 1, 'v2')
    a.v_xor_b32('v5', 'v3', 'v4'); a.v_lshlrev_b32('v7', 4, 'v5'); a.v_xor_b32('v5', 4, 'v5'); a.v_lshlrev_b32('v5', 4, 'v5')
    a.v_mul_u32_u24('v6', 384, 'v2')
    a.s_lshl_b32('s3', 's38', 2); a.s_add_u32('s3', 's3', 's42'); a.s_lshl_b32('s3', 's3', 5); a.s_lshl_b32('s4', 's40', 2); a.s_add_u32('s3', 's3', 's4'); a.s_mul_i32('s3', 's3', 12288)
    a.v_add_u32('v6', 's3', 'v6')
    for i in range(4):
        a.v_add_u32(vr(VV+i), 'v6', 'v7' if i % 2 == 0 else 'v5')
        if i: a.v_add_u32(vr(VV+i), hex(i*8*384), vr(VV+i))
    a.s_mul_i32('s50', 's42', 5120)
    def w_items(s):
        sg = s - 10; hr, sub = divmod(sg, 3)
        slot = slot_of(s) * SLOT
        items = []
        for b in range(5):
            def f(b=b):
                if b == 0:
                    a.s_add_u32('s3', 's41', hr); a.s_and_b32('s3', 's3', 3)
                    a.s_mul_i32('s46', 's3', 192*1280); a.s_mul_i32('s47', 's3', 12288)
                    if OPT['ROTW']:
                        a.s_add_u32('s3', 's38', sub)
                        a.s_cmp_ge_u32('s3', 3); a.s_cselect_b32('s4', 3, 0); a.s_sub_u32('s3', 's3', 's4')
                        a.s_cmp_ge_u32('s3', 3); a.s_cselect_b32('s4', 3, 0); a.s_sub_u32('s3', 's3', 's4')
                        a.s_mul_i32('s4', 's3', 64*1280); a.s_add_u32('s46', 's46', 's4')
                        a.s_lshl_b32('s4', 's3', 7); a.s_add_u32('s47', 's47', 's4')
                    else:
                        a.s_add_u32('s46', 's46', hex(64*sub*1280)); a.s_add_u32('s47', 's47', sub*128)
                a.s_add_u32('m0', 's50', hex(slot + b*1024))
                a.buffer_load_dwordx4(vr(WV+b), 's[52:55]', 's46', mods=M('offen', OPT['NT_WO'], 'lds')); vq.issue(('S', s))
            items.append(f)
        for i in range(4):
            def f(i=i):
                a.s_add_u32('m0', 's45', hex(slot + 20480 + i*1024))
                a.buffer_load_dwordx4(vr(VV+i), 's[28:31]', 's47', mods=M('offen', OPT['NT_KV'], 'lds')); vq.issue(('S', s))
            items.append(f)
        return items
    def stage_items(s): return q_items(a, vq, 8, s) if s < 10 else w_items(s)
    def k_stage():
        srd(a, 24, 10, 11, 16*32*12288)
        a.s_mov_b32('s5', 3277)
        a.s_lshl_b32('s3', 's38', 2); a.s_add_u32('s3', 's3', 's42'); a.s_lshl_b32('s3', 's3', 5); a.s_add_u32('s3', 's3', 's37'); a.s_mul_i32('s3', 's3', 12288)
        for b in range(5):
            a.v_add_u32('v2', 64*b, 'v1')
            a.v_mul_lo_u32('v3', 'v2', 's5'); a.v_lshrrev_b32('v3', 16, 'v3')
            a.v_mul_u32_u24('v4', 20, 'v3'); a.v_sub_u32('v4', 'v2', 'v4')
            a.v_bfe_u32('v5', 'v3', 2, 2); a.v_xor_b32('v4', 'v4', 'v5')
            a.v_mul_u32_u24('v3', 384, 'v3'); a.v_lshl_add_u32('v3', 'v4', 4, 'v3')
            a.v_add_u32(vr(32+b), 's3', 'v3')
        a.s_mul_i32('s51', 's42', 10240)
        a.s_mov_b32('s46', 16*384)
        for aa in range(2):
            for b in range(5):
                a.s_add_u32('m0', 's51', hex(3*SLOT + aa*5120 + b*1024))
                a.buffer_load_dwordx4(vr(32+b), 's[24:27]', 's46' if aa else 0, mods=M('offen', OPT['NT_KV'], 'lds')); vq.issue(('S', OPT['KS']))
    CS = OPT['CSTAGES']
    st.stamp('pre')
    vq.wait([('S', 0)]); st.stamp('q0'); a.s_barrier()
    nxt = CS + 1
    for i in range(0, NST-1):
        if i in ((2, 4, 6, 8, 10, 12, 15, 18) if OPT['INSTR'] == 1 else (1, 2, 3, 4)): st.stamp(f'B{i}')
        def allowed(sg):
            if sg <= 2: return True
            if sg < OPT['KS'] + 4: return i >= sg - 2
            return i >= sg - 3
        while nxt <= NST-1 and allowed(nxt):
            for f in stage_items(nxt): f()
            nxt += 1
        if i == OPT['KI']: k_stage()
        vq.wait([('S', i+1)])
        a.s_barrier()
    get_nonce(a, 'v2', 's43', 'ld')
    a.s_lshl_b32('s3', 's36', 2); a.s_add_u32('s3', 's3', 's38'); a.s_lshl_b32('s3', 's3', 2); a.s_add_u32('s3', 's3', 's41')
    a.s_lshr_b32('s4', 's40', 1)
    a.s_lshl_b32('s5', 's3', 2); a.s_add_u32('s5', 's5', 's4'); a.s_lshl_b32('s5', 's5', 7); a.s_add_u32('s44', 's5', hex(FP_OFF))
    a.s_and_b32('s5', 's40', 1); a.s_mul_i32('s5', 's5', 5)
    a.s_add_u32('s45', 's5', 's42')
    a.s_mul_i32('s46', 's3', 8*40960); a.s_mul_i32('s47', 's4', 10240); a.s_add_u32('s46', 's46', 's47'); a.s_add_u32('s46', 's46', hex(P_OFF))
    a.s_lshl_b32('s47', 's38', 2); a.s_add_u32('s47', 's47', 's4'); a.s_mul_i32('s47', 's47', 32*2560)
    a.s_mul_i32('s3', 's36', 1280); a.s_add_u32('s47', 's47', 's3'); a.s_mul_i32('s3', 's41', 320); a.s_add_u32('s47', 's47', 's3')
    a.v_and_b32('v2', 31, 'v1'); a.v_mul_u32_u24('v2', 2560, 'v2'); a.v_lshrrev_b32('v3', 5, 'v1'); a.v_lshl_add_u32('v2', 'v3', 4, 'v2')
    a.v_and_b32('v4', 7, 'v1'); a.v_lshlrev_b32('v4', 2, 'v4')
    a.v_lshlrev_b32('v30', 4, 'v1')
    a.s_barrier()
    st.stamp('D')
    if OPT['PPOLL']:
        a.s_cmp_eq_u32('s42', 0); a.s_cbranch_scc0('L_pollP_done')
        a.s_mov_b32('s50', 0)
        a.buffer_load_dword('v5', 'v4', 's[32:35]', 's44', mods='offen sc1')
        a.s_sleep(OPT['PSLEEP'])
        a.buffer_load_dword('v6', 'v4', 's[32:35]', 's44', mods='offen sc1')
        a.s_sleep(OPT['PSLEEP'])
        a.buffer_load_dword('v7', 'v4', 's[32:35]', 's44', mods='offen sc1')
        a.label('L_pollP')
        for r_ in ('v5', 'v6', 'v7'):
            a.s_waitcnt('vmcnt(2)')
            a.v_cmp_ne_u32('vcc', 's43', r_)
            a.s_cmp_lg_u64('vcc', 0); a.s_cbranch_scc0('L_pollP_ok')
            a.buffer_load_dword(r_, 'v4', 's[32:35]', 's44', mods='offen sc1')
        a.s_add_u32('s50', 's50', 1)
        a.s_cmp_le_u32('s50', OPT['SPIN_MAX']); a.s_cbranch_scc1('L_pollP')
        a.label('L_pollP_ok')
        a.label('L_pollP_done')
        a.s_barrier()
    else:
        a.s_mov_b32('s50', 0)
        a.label('L_pollP')
        a.buffer_load_dword('v5', 'v4', 's[32:35]', 's44', mods='offen sc1')
        a.s_waitcnt('vmcnt(0)')
        a.v_cmp_ne_u32('vcc', 's43', 'v5')
        a.s_add_u32('s50', 's50', 1)
        a.s_cmp_gt_u32('s50', OPT['SPIN_MAX']); a.s_cbranch_scc1('L_pollP_done')
        a.s_cmp_lg_u64('vcc', 0); a.s_cbranch_scc1('L_pollP')
        a.label('L_pollP_done')
    st.stamp('polled')
    def reduce_load(stu, base):
        a.s_lshl_b32('s3', stu, 10); a.s_add_u32('s3', 's3', 's46')
        for kk in range(8):
            a.buffer_load_dwordx4(vr(base+4*kk, 4), 'v30', 's[32:35]', 's3', mods='offen sc1')
            if kk < 7: a.s_add_u32('s3', 's3', 40960)
    def reduce_sum(stu, base, first_wait, dst):
        for kk in range(8):
            a.s_waitcnt(f'vmcnt({first_wait-kk})')
            for i in range(4):
                src = vr(base+4*kk+i)
                if kk == 0:
                    a.v_lshlrev_b32(vr(8+2*i), 16, src); a.v_and_b32(vr(9+2*i), '0xffff0000', src)
                else:
                    a.v_lshlrev_b32('v16', 16, src); a.v_and_b32('v17', '0xffff0000', src)
                    a.v_add_f32(vr(8+2*i), vr(8+2*i), 'v16'); a.v_add_f32(vr(9+2*i), vr(9+2*i), 'v17')
        for i in range(4): a.v_cvt_pk_bf16_f32(vr(dst+i), vr(8+2*i), vr(9+2*i))
        a.s_lshl_b32('s3', stu, 5); a.s_add_u32('s3', 's3', 's47')
        a.buffer_store_dwordx4(vr(dst, 4), 'v2', 's[56:59]', 's3', mods=M('offen', OPT['OUTPOL']))
    a.s_cmp_eq_u32('s42', 0); a.s_cbranch_scc1('L_red2')
    reduce_load('s45', 64); reduce_sum('s45', 64, 7, 24)
    a.s_branch('L_red_done')
    a.label('L_red2')
    a.s_add_u32('s50', 's45', 4)
    reduce_load('s45', 64); reduce_load('s50', 96)
    reduce_sum('s45', 64, 15, 24)
    reduce_sum('s50', 96, 8, 20)
    a.label('L_red_done')
    if OPT['INSTR']:
        st.stamp('red'); a.s_waitcnt('vmcnt(0)'); st.stamp('end')
        a.s_cmp_eq_u32('s42', 0); a.s_cbranch_scc0('L_ld_end'); st.flush(0); a.label('L_ld_end')
    a.s_endpgm()

    a.label('L_compute')
    if OPT['PRIO']: a.s_setprio(OPT['PRIO'])
    AF = 32; XF = 56; ACC = 64; SA = 240; KF = 160; QB = 64
    LN16 = 'v31'
    st = Stamps(a)
    vq = Q(a, 'vmcnt', 63)
    a.v_mov_b32('v30', hex(N_OFF))
    a.s_waitcnt('lgkmcnt(0)')
    srd(a, 32, 6, 7, WS_SIZE)
    def early_setup():
        ring_setup(a, 's39', 208, 's54', 's55')
        srd(a, 20, 14, 15, 640*6144*2)
        srd(a, 16, 8, 9, 512*640*2)
        srd(a, 24, 10, 11, 16*32*12288)
        a.v_and_b32('v216', 31, 'v1'); a.v_mul_u32_u24('v216', 384, 'v216'); a.v_lshrrev_b32('v3', 5, 'v1'); a.v_lshl_add_u32('v216', 'v3', 4, 'v216')
        a.s_lshl_b32('s3', 's38', 2); a.s_add_u32('s3', 's3', 's39'); a.s_lshl_b32('s3', 's3', 5); a.s_add_u32('s3', 's3', 's37'); a.s_mul_i32('s56', 's3', 12288)
    def early_issue():
        for s_ in range(1, OPT['CSTAGES']+1):
            for f in q_items(a, vq, 208, s_, 's54', 's55'): f()
        for s12 in (10, 11):
            a.buffer_load_dwordx4(vr(KF+4*s12, 4), 'v216', 's[24:27]', 's56', mods=M('offen', offm(s12*32), OPT['NT_KV'])); vq.issue(('K',))
    srd(a, 60, 58, 59, 256)
    a.s_or_b32('s50', 's2', 's39'); a.s_cmp_eq_u32('s50', 0); a.s_cbranch_scc0('L_no_nonce0')
    a.buffer_load_dword('v29', 'v30', 's[32:35]', 0, mods='offen sc1')
    a.label('L_no_nonce0')
    early_setup()
    if OPT['XSPLIT']:
        if OPT['ROTQ'] == 0: a.s_mov_b32('s47', 0)
        elif OPT['ROTQ'] == 1: a.s_mul_i32('s47', 's38', 5); a.s_lshr_b32('s47', 's47', 1); a.s_lshl_b32('s47', 's47', 7)
        elif OPT['ROTQ'] == 2: a.s_and_b32('s47', 's37', 7); a.s_lshl_b32('s4', 's36', 1); a.s_add_u32('s47', 's47', 's4'); a.s_lshl_b32('s47', 's47', 7)
        else: a.s_lshr_b32('s47', 's37', 3); a.s_mul_i32('s47', 's47', 5); a.s_lshr_b32('s47', 's47', 1); a.s_add_u32('s47', 's47', 's36'); a.s_lshl_b32('s47', 's47', 7)
        for f in q_items(a, vq, 208, 0, 's54', 's55')[6:]: f()
    if not OPT['KLATE']: early_issue()
    a.s_cmp_eq_u32('s50', 0); a.s_cbranch_scc0('L_no_nonce')
    a.s_waitcnt(('vmcnt(4)' if OPT['XSPLIT'] else 'vmcnt(0)') if OPT['KLATE'] else f"vmcnt({10*OPT['CSTAGES']+2})")
    a.v_add_u32('v29', hex(NONCE_C), 'v29')
    a.v_cmp_eq_u32('vcc', 0, 'v29')
    a.v_mov_b32('v4', hex(NONCE_C))
    a.v_cndmask_b32('v29', 'v29', 'v4', 'vcc')
    a.s_mov_b64('exec', 1)
    a.buffer_store_dword('v29', 'v30', 's[32:35]', 0, mods='offen sc1')
    a.v_mov_b32('v4', 0)
    a.buffer_store_dword('v29', 'v4', 's[60:63]', 0, mods='offen sc1')
    a.s_mov_b64('exec', -1)
    a.label('L_no_nonce')
    T = 32
    hf, G2, r_, d48, t1, t2_, t3, t4 = [vr(T+i) for i in range(8)]
    a.v_lshrrev_b32(hf, 5, 'v1'); a.v_bfe_u32(G2, 'v1', 4, 1); a.v_bfe_u32(r_, 'v1', 2, 2)
    a.v_and_b32(d48, 1, 'v1'); a.v_lshlrev_b32(d48, 1, d48); a.v_bfe_u32(t1, 'v1', 1, 1); a.v_or_b32(d48, d48, t1)
    a.v_lshl_add_u32(d48, G2, 2, d48); a.v_lshlrev_b32(d48, 3, d48)
    a.v_lshrrev_b32(t1, 1, r_); a.v_lshlrev_b32(t1, 6, t1); a.v_add_u32(t1, d48, t1)
    a.v_lshl_add_u32(t2_, hf, 3, r_)
    a.v_lshlrev_b32(t3, 7, t2_); a.v_add_u32('v2', t3, t1)
    a.v_xor_b32('v3', 64, 'v2')
    a.v_add_u32('v4', hex(2*SLOT), 'v2'); a.v_add_u32('v5', hex(2*SLOT), 'v3')
    a.v_mul_u32_u24('v14', 320, t2_); a.v_add_u32('v14', 'v14', d48)
    a.v_add_u32('v15', hex(2*SLOT), 'v14')
    a.v_and_b32(t3, 31, 'v1'); a.v_bfe_u32(t4, 'v1', 1, 3); a.v_xor_b32(t4, t4, hf); a.v_lshlrev_b32(t4, 4, t4)
    a.s_lshl_b32('s3', 's39', 12); a.s_add_u32('s3', 's3', 20480)
    a.v_lshl_add_u32(G2, t3, 7, t4); a.v_add_u32('v6', 's3', G2)
    for s in range(1, 4): a.v_xor_b32(vr(6+s), 32*s, 'v6')
    for s in range(4): a.v_add_u32(vr(10+s), hex(2*SLOT), vr(6+s))
    a.v_mul_u32_u24('v16', 320, t3); a.v_bfe_u32('v17', 'v1', 2, 2); a.v_xor_b32('v17', 'v17', hf); a.v_lshl_add_u32('v16', 'v17', 4, 'v16')
    a.s_mul_i32('s3', 's39', 10240); a.s_add_u32('s3', 's3', 3*SLOT); a.v_add_u32('v16', 's3', 'v16')
    a.v_xor_b32('v17', 32, 'v16')
    a.v_lshlrev_b32(LN16, 4, 'v1')
    a.s_lshl_b32('s3', 's36', 2); a.s_add_u32('s3', 's3', 's38')
    a.s_lshl_b32('s4', 's3', 3); a.s_add_u32('s4', 's4', 's40'); a.s_lshl_b32('s4', 's4', 4); a.s_add_u32('s4', 's4', 's39'); a.s_lshl_b32('s45', 's4', 12)
    a.s_add_u32('s45', 's45', hex(PX_OFF))
    a.s_lshl_b32('s3', 's3', 2); a.s_add_u32('s3', 's3', 's41')
    a.s_lshl_b32('s4', 's3', 3); a.s_add_u32('s4', 's4', 's40'); a.s_mul_i32('s4', 's4', 40960); a.s_mul_i32('s5', 's39', 10240); a.s_add_u32('s4', 's4', 's5'); a.s_add_u32('s52', 's4', hex(P_OFF))
    a.s_lshl_b32('s4', 's3', 2); a.s_add_u32('s4', 's4', 's39'); a.s_lshl_b32('s4', 's4', 7); a.s_lshl_b32('s5', 's40', 2); a.s_add_u32('s4', 's4', 's5'); a.s_add_u32('s43', 's4', hex(FP_OFF))

    q = Q(a, 'lgkmcnt', 15)
    def rdA(t, n):
        st_, s = divmod(n, 4); slot = slot_of(st_)
        base = (2 if slot < 2 else 4) + (t % 2)
        off = (slot % 2) * SLOT + (t//2)*8192 + s*2048
        for e in range(2):
            a.ds_read_b64_tr_b16(vr(AF+4*t+2*e, 2), vr(base), mods=offm(off+e*512))
            q.issue(('A', t, n))
    def rdX(n):
        st_, s = divmod(n, 4); slot = slot_of(st_)
        base = (6 if slot < 2 else 10) + s
        a.ds_read_b128(vr(XF+4*(n % 2), 4), vr(base), mods=offm((slot % 2)*SLOT + (4096 if st_ < 10 else 0)))
        q.issue(('X', n))
    def mf(t, n):
        q.wait([('A', t, n), ('X', n)])
        a.v_mfma_f32_32x32x16_bf16(vr(ACC+16*t, 16), vr(AF+4*t, 4), vr(XF+4*(n % 2), 4), '0' if n == 0 else vr(ACC+16*t, 16))
    def cvtQ(t):
        for i in range(8): a.v_cvt_pk_bf16_f32(vr(QB+8*t+i), vr(ACC+16*t+2*i), vr(ACC+16*t+2*i+1))
    AF2 = 32
    VF2 = 16
    RTG = [24, 200, 204, 52]
    NK = 48
    VWT = [112, 128, 144, 208, 224]
    OAT = [64, 80, 96, 160, 176]
    def rdW(t, n2):
        s_, k = divmod(n2, 4); st_ = 10 + s_; slot = slot_of(st_)
        base = 14 if slot < 2 else 15
        off = (slot % 2)*SLOT + k*5120 + t*64
        for e in range(2):
            a.ds_read_b64_tr_b16(vr(AF2+4*t+2*e, 2), vr(base), mods=offm(off+e*1280))
            q.issue(('W', t, n2))
    def rdV(n2):
        s_, k = divmod(n2, 4); st_ = 10 + s_; slot = slot_of(st_)
        base = (6 if slot < 2 else 10) + k
        a.ds_read_b128(vr(VF2+4*(n2 % 2), 4), vr(base), mods=offm((slot % 2)*SLOT))
        q.issue(('V', n2))
    if OPT['KLATE']: early_issue()
    vq.wait([('S', 0)])
    st.stamp('pre')
    a.s_barrier()
    st.stamp('B0')
    rdX(0)
    for t in range(6): rdA(t, 0)
    def rdK(s12):
        a.ds_read_b128(vr(KF+4*s12, 4), vr(16 + (s12 & 1)), mods=offm((s12 >> 1)*64)); q.issue(('K', s12))
    for n in range(40):
        s = n % 4
        if s < 3:
            rdX(n+1)
            for t in range(6):
                mf(t, n); rdA(t, n+1)
                kn = n - 4*OPT['KS']
                if 0 <= kn < 2 and t < 5: rdK(5*kn + t)
        else:
            for t in range(3): mf(t, n)
            q.waitall()
            vq.wait([('S', n//4 + 1)])
            if n == 23:
                a.v_mov_b32('v28', 0)
                a.buffer_load_dword('v29', 'v28', 's[60:63]', 0, mods='offen sc1'); vq.issue(('N',))
            a.s_barrier()
            if n < 39:
                rdX(n+1); rdA(0, n+1); rdA(1, n+1)
                mf(3, n); rdA(2, n+1); mf(4, n); rdA(3, n+1); mf(5, n); rdA(4, n+1); rdA(5, n+1)
            else:
                rdV(0); rdW(0, 0); rdW(1, 0); rdW(2, 0)
                mf(3, n); rdW(3, 0); cvtQ(0); mf(4, n); rdW(4, 0); cvtQ(1); mf(5, n); cvtQ(2)
    st.stamp('qdone')
    vq.wait([('K',)])
    def mS(s12):
        a.v_mfma_f32_32x32x16_bf16(vr(SA, 16), vr(KF+4*s12, 4), vr(QB+4*s12, 4), '0' if s12 == 0 else vr(SA, 16))
    mS(0); mS(1); cvtQ(3); mS(2); mS(3); cvtQ(4); mS(4); mS(5); cvtQ(5)
    for s12 in range(6, 12): mS(s12)
    st.stamp('sdone')
    S = lambda j: vr(SA+j)
    m0_, m1_, a0_, a1_ = 'v52', 'v53', 'v54', 'v55'
    c = 192 ** -0.5 * 1.4426950408889634
    cbits = struct.unpack('<I', struct.pack('<f', c))[0]
    sm = []
    A = lambda f: sm.append(f)
    A(lambda: a.s_mov_b32('s46', hex(cbits)))
    A(lambda: a.v_max3_f32(m0_, S(0), S(1), S(2)))
    for j in range(3, 15, 2): A(lambda j=j: a.v_max3_f32(m0_, m0_, S(j), S(j+1)))
    A(lambda: a.v_max_f32(m0_, m0_, S(15)))
    A(lambda: a.v_mov_b32(m1_, m0_))
    A(lambda: a.v_permlane32_swap_b32(m0_, m1_))
    A(lambda: a.v_max_f32(m0_, m0_, m1_))
    A(lambda: a.v_mul_f32(m0_, 's46', m0_))
    for j in range(16): A(lambda j=j: a.v_fma_f32(S(j), S(j), 's46', '-' + m0_))
    for j in range(16): A(lambda j=j: a.v_exp_f32(S(j), S(j)))
    A(lambda: a.v_add_f32(a0_, S(0), S(1))); A(lambda: a.v_add_f32(a1_, S(2), S(3)))
    for j in range(4, 16, 2):
        A(lambda j=j: a.v_add_f32(a0_, a0_, S(j))); A(lambda j=j: a.v_add_f32(a1_, a1_, S(j+1)))
    A(lambda: a.v_add_f32(a0_, a0_, a1_))
    A(lambda: a.v_mov_b32(a1_, a0_))
    A(lambda: a.v_permlane32_swap_b32(a0_, a1_))
    A(lambda: a.v_add_f32(a0_, a0_, a1_))
    A(lambda: a.v_rcp_f32(a0_, a0_))
    for j in range(16): A(lambda j=j: a.v_mul_f32(S(j), S(j), a0_))
    PR = {0: 56, 1: 240, 2: 248, 3: 192}
    for i in range(8): A(lambda i=i: a.v_cvt_pk_bf16_f32(vr(PR[0]+i), S(2*i), S(2*i+1)))
    def sm_step(k):
        for _ in range(k):
            if sm: sm.pop(0)()
    TG = 32
    def publish():
        vq.wait([('N',)])
        a.v_readfirstlane_b32('s47', 'v29')
        a.s_cmp_lg_u32('s47', 0); a.s_cbranch_scc1('L_have_nonce')
        get_nonce(a, 'v29', 's47', 'cp')
        a.label('L_have_nonce')
        vq.q = []
        assert not sm
        for s_ in range(4):
            g_ = RTG[s_]
            a.v_mov_b32(vr(g_), vr(PR[0]+2*s_)); a.v_mov_b32(vr(g_+1), 's47')
            a.v_mov_b32(vr(g_+2), vr(PR[0]+2*s_+1)); a.v_mov_b32(vr(g_+3), 's47')
        a.s_lshl_b32('s3', 's41', 14); a.s_add_u32('s3', 's3', 's45')
        for s_ in range(4):
            a.buffer_store_dwordx4(vr(RTG[s_], 4), LN16, 's[32:35]', 's3', mods=M('offen', offm(s_*1024), 'sc1')); vq.issue(('PS',))
        st.stamp('pstored')
    def mw(t, n2):
        q.wait([('W', t, n2), ('V', n2)])
        a.v_mfma_f32_32x32x16_bf16(vr(VWT[t], 16), vr(VF2+4*(n2 % 2), 4), vr(AF2+4*t, 4), '0' if n2 % 12 == 0 else vr(VWT[t], 16))
        sm_step(OPT['SMK'])
    def ldP(hr):
        a.s_add_u32('s3', 's41', hr); a.s_and_b32('s3', 's3', 3); a.s_lshl_b32('s3', 's3', 14); a.s_add_u32('s53', 's3', 's45')
        for s_ in range(4):
            a.buffer_load_dwordx4(vr(RTG[s_], 4), LN16, 's[32:35]', 's53', mods=M('offen', offm(s_*1024), 'sc1')); vq.issue(('PL', hr))
    def chkP(hr):
        L = f'L_chkP{hr}'
        a.s_mov_b32('s50', 0)
        a.s_waitcnt('vmcnt(0)'); vq.q = []
        a.s_branch(L + '_c')
        a.label(L)
        for s_ in range(4):
            a.buffer_load_dwordx4(vr(RTG[s_], 4), LN16, 's[32:35]', 's53', mods=M('offen', offm(s_*1024), 'sc1'))
        a.s_waitcnt('vmcnt(0)')
        a.label(L + '_c')
        a.v_xor_b32('v28', 's47', vr(RTG[0]+1))
        for s_ in range(4):
            for o in (1, 3):
                if s_ == 0 and o == 1: continue
                a.v_xor_b32('v29', 's47', vr(RTG[s_]+o)); a.v_or_b32('v28', 'v28', 'v29')
        a.v_cmp_ne_u32('vcc', 0, 'v28')
        a.s_add_u32('s50', 's50', 1)
        a.s_cmp_gt_u32('s50', OPT['SPIN_MAX']); a.s_cbranch_scc1(L + '_d')
        a.s_cmp_lg_u64('vcc', 0); a.s_cbranch_scc1(L)
        a.label(L + '_d')
        for s_ in range(4):
            a.v_mov_b32(vr(PR[hr]+2*s_), vr(RTG[s_])); a.v_mov_b32(vr(PR[hr]+2*s_+1), vr(RTG[s_]+2))
    def cvt_store(dst, acc, sbase, f0):
        for i in range(8): a.v_cvt_pk_bf16_f32(vr(dst+i), vr(acc+2*i), vr(acc+2*i+1))
        for u in range(2):
            f = f0+u
            so = sbase; off = f*1024
            if off >= 4096:
                a.s_add_u32('s46', sbase, hex(off & ~4095)); so = 's46'; off &= 4095
            a.buffer_store_dwordx4(vr(dst+4*u, 4), LN16, 's[32:35]', so, mods=M('offen', offm(off), 'sc1'))
            vq.issue(('ST',))
    cnt = 0
    for n2 in range(NK):
        hr, k12 = divmod(n2, 12)
        s = n2 % 4
        last = (n2 == NK-1)
        if s < 3:
            rdV(n2+1)
            for t in range(5):
                mw(t, n2); rdW(t, n2+1); cnt += 1
        else:
            for t in range(2): mw(t, n2); cnt += 1
            if not last:
                q.waitall(); a.s_barrier()
                if (n2//4) in (1, 4, 7): st.stamp(f'W{n2//4+1}')
                rdV(n2+1); rdW(0, n2+1); rdW(1, n2+1)
                mw(2, n2); rdW(2, n2+1); mw(3, n2); rdW(3, n2+1); mw(4, n2); rdW(4, n2+1)
            else:
                mw(2, n2); mw(3, n2); mw(4, n2)
            cnt += 3
        if n2 == OPT['PUB_K']: publish()
        if k12 == OPT['PL_K'] and hr >= 1: ldP(hr)
        if k12 == OPT['PC_K'] and hr >= 1: chkP(hr)
        if k12 == 11:
            for t in range(5):
                for i in range(8): a.v_cvt_pk_bf16_f32(vr(VWT[t]+i), vr(VWT[t]+2*i), vr(VWT[t]+2*i+1))
                for u in range(2):
                    a.v_mfma_f32_32x32x16_bf16(vr(OAT[t], 16), vr(VWT[t]+4*u, 4), vr(PR[hr]+4*u, 4), '0' if (hr == 0 and u == 0) else vr(OAT[t], 16))
                if hr == 3 and t >= 1: cvt_store(VWT[t-1]+8, OAT[t-1], 's52', 2*(t-1))
    cvt_store(VWT[4]+8, OAT[4], 's52', 8)
    st.stamp('mdone')
    a.s_barrier()
    a.s_waitcnt('vmcnt(0)'); vq.q = []
    a.s_mov_b64('exec', 1)
    a.v_mov_b32('v5', 's47'); a.v_mov_b32('v6', 0)
    a.buffer_store_dword('v5', 'v6', 's[32:35]', 's43', mods='offen sc1')
    a.s_mov_b64('exec', -1)
    if OPT['INSTR']:
        st.stamp('flag')
        a.s_cmp_eq_u32('s39', 0); a.s_cbranch_scc0('L_c_end'); st.flush(1); a.label('L_c_end')
    a.s_endpgm()
    a.label('L_end')
    a.s_endpgm()


DESC = """;
;   P tiles (2 KB) are exchanged between the 4 workgroups of a head group through d_ws as {data, tag} granules,
;   the 8 split-K partial tiles through d_ws + per-wave flags; tags/flags carry a per-launch nonce published through d_debug.
"""

def build(path):
    hdr = open('cdna_kernels/%s.s.ref' % NAME).read().split('\n')
    head = [l for l in hdr if l.startswith(';') and '@launch' not in l and 'Override' not in l and 'grid=ceil' not in l]
    out = '\n'.join(head) + '\n' + DESC
    out += '; @launch grid=(256,1,1) block=(512,1,1) lds=163840\n'
    out += '.amdgcn_target "amdgcn-amd-amdhsa--gfx950"\n.text\n'
    a = Asm(); gen(a); out += a.finalize()
    out += f""".section .rodata,"a"
.p2align 6
.amdhsa_kernel {KN}
  .amdhsa_next_free_vgpr 256
  .amdhsa_next_free_sgpr 102
  .amdhsa_accum_offset 256
  .amdhsa_group_segment_fixed_size 0
  .amdhsa_kernarg_size 104
  .amdhsa_user_sgpr_count 2
  .amdhsa_user_sgpr_kernarg_segment_ptr 1
  .amdhsa_system_sgpr_workgroup_id_x 1
.end_amdhsa_kernel
"""
    open(path, 'w').write(out)

if __name__ == '__main__':
    path = sys.argv[1]
    for arg in sys.argv[2:]:
        k, v = arg.split('=')
        OPT[k] = int(v) if isinstance(OPT[k], int) else v
    build(path)
```
